```python
import torch

def _softmax(x, axis=-1):
    return torch.softmax(x, dim=axis)
def _gelu(x):
    return torch.nn.functional.gelu(x, approximate="tanh")
def _silu(x):
    return torch.nn.functional.silu(x)
def _sigmoid(x):
    return torch.sigmoid(x)
def _layernorm(x, axis=-1, eps=1e-5):
    m = x.mean(dim=axis, keepdim=True)
    v = x.var(dim=axis, keepdim=True, unbiased=False)
    return (x - m) / torch.sqrt(v + eps)
def _scatter_add(tgt, idx, src, axis=0):
    return tgt.clone().index_add_(axis, idx, src)
def _segment_sum(src, seg, n):
    out = torch.zeros((n,) + src.shape[1:], dtype=src.dtype)
    return out.index_add_(0, seg, src)
def _pad(x, pw):
    flat = tuple(v for pair in reversed(pw) for v in pair)
    return torch.nn.functional.pad(x, flat)

kernel_name = 'parallel_sum__gqa_block_cached__geglu_ffn__decode'

def setup_inputs():

    _w = (lambda a: (lambda t: t.to(torch.bfloat16) if t.is_floating_point() else t)(torch.as_tensor(a)))
    def _A_setup():
        B, Sq, D = 2, 1, 448
        Hq, Hkv, Sk, Dh = 16, 8, 32768, 256
        assert Hq % Hkv == 0, (Hq, Hkv)
        return {
            "x": _w((lambda *s: torch.randn(*s, dtype=torch.bfloat16) * 0.05)(B, Sq, D)),
            "k_cache": _w((lambda *s: torch.randn(*s, dtype=torch.bfloat16) * 3.2)(B, Hkv, Sk, Dh)),
            "v_cache": _w((lambda *s: torch.randn(*s, dtype=torch.bfloat16) * 1.6)(B, Hkv, Sk, Dh)),
            "wq": _w((lambda *s: torch.randn(*s, dtype=torch.bfloat16) * 3.2)(D, Hq * Dh) * (D ** -0.5)),
            "wo": _w((lambda *s: torch.randn(*s, dtype=torch.bfloat16) * 1.6)(Hq * Dh, D) * ((Hq * Dh) ** -0.5)),
        }
    _A_in = _A_setup()

    def _B_setup():
        B, S, D, F = 2, 1, 448, 1792
        return {
            "x": _w((lambda *s: torch.randn(*s, dtype=torch.bfloat16) * 0.05)(B, S, D)),
            "w_gate": _w((lambda *s: torch.randn(*s, dtype=torch.bfloat16) * 0.05)(D, F)),
            "w_up": _w((lambda *s: torch.randn(*s, dtype=torch.bfloat16) * 0.05)(D, F)),
            "w_down": _w((lambda *s: torch.randn(*s, dtype=torch.bfloat16) * 0.05)(F, D)),
        }
    _B_in = _B_setup()

    return {
        "A_x": _A_in["x"],
        "A_k_cache": _A_in["k_cache"],
        "A_v_cache": _A_in["v_cache"],
        "A_wq": _A_in["wq"],
        "A_wo": _A_in["wo"],
        "B_x": _B_in["x"],
        "B_w_gate": _B_in["w_gate"],
        "B_w_up": _B_in["w_up"],
        "B_w_down": _B_in["w_down"],
    }

def reference(A_x, A_k_cache, A_v_cache, A_wq, A_wo, B_x, B_w_gate, B_w_up, B_w_down):
    def _A_ref(x, k_cache, v_cache, wq, wo):
        B, Sq, D = x.shape
        Hq, Dh = 16, 256
        Hkv = k_cache.shape[1]
        rep = Hq // Hkv
        q = (lambda x, *d: x.permute(*d))((x @ wq).reshape(B, Sq, Hq, Dh), 0, 2, 1, 3)
        k = (lambda x, n, axis: torch.repeat_interleave(x, n, dim=axis))(k_cache, rep, axis=1)
        v = (lambda x, n, axis: torch.repeat_interleave(x, n, dim=axis))(v_cache, rep, axis=1)
        scores = torch.einsum("bhqd,bhkd->bhqk", q, k) * (Dh ** -0.5)
        p = _softmax(scores, axis=-1)
        o = torch.einsum("bhqk,bhkd->bhqd", p, v)
        return (lambda x, *d: x.permute(*d))(o, 0, 2, 1, 3).reshape(B, Sq, Hq * Dh) @ wo

    def _B_ref(x, w_gate, w_up, w_down):
        return (_gelu(x @ w_gate) * (x @ w_up)) @ w_down

    x = A_x
    xn = _layernorm(x, axis=-1)
    return x + _A_ref(xn, A_k_cache, A_v_cache, A_wq, A_wo) + _B_ref(xn, B_w_gate, B_w_up, B_w_down)
```

```python
import sys, math
NAME = "parallel_sum__gqa_block_cached__geglu_ffn__decode"
NSPLIT = 64
KPWG = 32768 // NSPLIT
KPW = KPWG // 4
NT = KPW // 16
WS_Q = 0
WS_H = 16384
WS_ML = 32768
WS_O = 65536
WS_P3 = WS_O + 32 * NSPLIT * 1024
WS_SIZE = 1073741824
LOG2E = 1.4426950408889634

out = []
def e(s): out.append("    " + s)
def lab(s): out.append(s + ":")
def f32(x):
    import struct
    return "0x%08x" % struct.unpack("<I", struct.pack("<f", x))[0]

def srd(d, ptr, size):
    e(f"s_mov_b32 s{d}, s{ptr}")
    e(f"s_and_b32 s{d+1}, s{ptr+1}, 0xffff")
    e(f"s_mov_b32 s{d+2}, {size:#x}")
    e(f"s_mov_b32 s{d+3}, 0x00020000")

def dpp_reduce(op, v):
    for sh in (1, 2, 4, 8):
        e("s_nop 1")
        if op == "max":
            e(f"v_max_f32_dpp v{v}, v{v}, v{v} row_shr:{sh} row_mask:0xf bank_mask:0xf")
        else:
            e(f"v_add_f32_dpp v{v}, v{v}, v{v} row_shr:{sh} row_mask:0xf bank_mask:0xf bound_ctrl:0")

def dpp_reduce64_add(v):
    dpp_reduce("add", v)
    e("s_nop 1")
    e(f"v_add_f32_dpp v{v}, v{v}, v{v} row_bcast:15 row_mask:0xa bank_mask:0xf")
    e("s_nop 1")
    e(f"v_add_f32_dpp v{v}, v{v}, v{v} row_bcast:31 row_mask:0xc bank_mask:0xf")
    e("s_nop 1")

def rbf16(v):
    e(f"v_cvt_pk_bf16_f32 v{v}, v{v}, v{v}")
    e(f"v_lshlrev_b32 v{v}, 16, v{v}")

def header(k):
    out.append(".globl " + k)
    out.append(".p2align 8")
    out.append(f".type {k},@function")
    lab(k)

def desc(k, vg, sg=64):
    return [".amdhsa_kernel " + k,
            f"  .amdhsa_next_free_vgpr {vg}",
            f"  .amdhsa_next_free_sgpr {sg}",
            f"  .amdhsa_accum_offset {((vg+3)//4)*4}",
            "  .amdhsa_group_segment_fixed_size 0",
            "  .amdhsa_kernarg_size 96",
            "  .amdhsa_user_sgpr_count 2",
            "  .amdhsa_user_sgpr_kernarg_segment_ptr 1",
            "  .amdhsa_system_sgpr_workgroup_id_x 1",
            ".end_amdhsa_kernel"]

def k1():
    k = "prep_kernel"
    header(k)
    e("s_cmp_ge_u32 s2, 92")
    e("s_cbranch_scc1 K1_END")
    e("s_load_dwordx2 s[4:5], s[0:1], 0")
    e("s_load_dwordx2 s[6:7], s[0:1], 24")
    e("s_load_dwordx2 s[8:9], s[0:1], 48")
    e("s_load_dwordx2 s[10:11], s[0:1], 56")
    e("s_load_dwordx2 s[28:29], s[0:1], 88")
    e("v_and_b32 v1, 63, v0")
    e("v_lshrrev_b32 v2, 6, v0")
    e("s_waitcnt lgkmcnt(0)")
    srd(12, 4, 1792)
    srd(16, 6, 448 * 4096 * 2)
    srd(20, 8, 448 * 1792 * 2)
    srd(24, 10, 448 * 1792 * 2)
    srd(32, 28, WS_SIZE)
    e("v_mul_u32_u24 v3, 14, v1")
    for b in range(2):
        for i in range(7):
            e(f"buffer_load_ushort v{8+b*7+i}, v3, s[12:15], 0 offen offset:{b*896+i*2}")
    e("s_waitcnt vmcnt(0)")
    for b in range(2):
        for i in range(7):
            e(f"v_lshlrev_b32 v{8+b*7+i}, 16, v{8+b*7+i}")
    for b in range(2):
        x0 = 8 + b * 7
        e(f"v_mov_b32 v4, v{x0}")
        for i in range(1, 7):
            e(f"v_add_f32 v4, v4, v{x0+i}")
        dpp_reduce64_add(4)
        e("v_readlane_b32 s40, v4, 63")
        e("s_nop 1")
        e("v_mov_b32 v5, s40")
        e(f"v_mul_f32 v5, {f32(1.0/448)}, v5")
        e(f"v_sub_f32 v6, v{x0}, v5")
        e("v_mul_f32 v4, v6, v6")
        for i in range(1, 7):
            e(f"v_sub_f32 v6, v{x0+i}, v5")
            e("v_fmac_f32 v4, v6, v6")
        dpp_reduce64_add(4)
        e("v_readlane_b32 s40, v4, 63")
        e("s_nop 1")
        e("v_mov_b32 v6, s40")
        e(f"v_mul_f32 v6, {f32(1.0/448)}, v6")
        rbf16(5); rbf16(6)
        e(f"v_add_f32 v6, {f32(1e-5)}, v6")
        rbf16(6)
        e("v_sqrt_f32 v6, v6")
        e("s_nop 0")
        rbf16(6)
        e("v_rcp_f32 v6, v6")
        e("s_nop 0")
        for i in range(7):
            e(f"v_sub_f32 v{x0+i}, v{x0+i}, v5")
            rbf16(x0 + i)
            e(f"v_mul_f32 v{x0+i}, v{x0+i}, v6")
            rbf16(x0 + i)
    e("v_mul_u32_u24 v3, 28, v1")
    for b in range(2):
        for i in range(7):
            e(f"ds_write_b32 v3, v{8+b*7+i} offset:{b*1792+i*4}")
    e("s_waitcnt lgkmcnt(0)")
    e("v_lshrrev_b32 v4, 3, v1")
    e("v_mul_u32_u24 v5, 112, v2")
    e("v_add_u32 v5, v5, v4")
    e("v_and_b32 v6, 7, v1")
    e("v_lshlrev_b32 v6, 4, v6")
    e("v_lshlrev_b32 v7, 2, v5")
    e("s_cmp_ge_u32 s2, 64")
    e("s_cbranch_scc1 K1_FFN")
    e("s_lshl_b32 s41, s2, 7")
    e("v_lshlrev_b32 v30, 13, v5")
    e("v_add_u32 v30, v30, v6")
    for it in range(14):
        e(f"s_add_u32 s42, s41, {it*8*8192}")
        e(f"buffer_load_dwordx4 v[{32+it*4}:{35+it*4}], v30, s[16:19], s42 offen")
    for i in range(16):
        e(f"v_mov_b32 v{96+i}, 0")
    def gemv(wreg, acc, it):
        for j in range(4):
            e(f"v_lshlrev_b32 v28, 16, v{wreg+j}")
            e(f"v_and_b32 v29, 0xffff0000, v{wreg+j}")
            for b in range(2):
                e(f"v_fmac_f32 v{acc+b*8+2*j}, v{24+b}, v28")
                e(f"v_fmac_f32 v{acc+b*8+2*j+1}, v{24+b}, v29")
    for it in range(14):
        e(f"ds_read_b32 v24, v7 offset:{it*32}")
        e(f"ds_read_b32 v25, v7 offset:{1792+it*32}")
        e(f"s_waitcnt vmcnt({13-it}) lgkmcnt(0)")
        gemv(32 + it * 4, 96, it)
    e("v_lshlrev_b32 v26, 3, v2")
    e("v_add_u32 v26, v26, v4")
    e("v_lshlrev_b32 v26, 9, v26")
    e("v_lshlrev_b32 v27, 1, v6")
    e("v_add_u32 v26, v26, v27")
    for b in range(2):
        e(f"ds_write_b128 v26, v[{96+b*8}:{99+b*8}] offset:{4096+b*256}")
        e(f"ds_write_b128 v26, v[{100+b*8}:{103+b*8}] offset:{4096+b*256+16}")
    e("s_waitcnt lgkmcnt(0)")
    e("s_barrier")
    e("v_cmp_gt_u32 vcc, 128, v0")
    e("s_and_saveexec_b64 s[44:45], vcc")
    e("s_cbranch_execz K1_END")
    e("v_lshlrev_b32 v26, 2, v0")
    e("v_mov_b32 v27, 0")
    for g in range(32):
        e(f"ds_read_b32 v{32+g}, v26 offset:{4096+g*512}")
    e("s_waitcnt lgkmcnt(0)")
    for g in range(32):
        e(f"v_add_f32 v27, v27, v{32+g}")
    e("v_cvt_pk_bf16_f32 v27, v27, v27")
    e("v_lshrrev_b32 v28, 6, v0")
    e("v_lshlrev_b32 v28, 13, v28")
    e("v_and_b32 v29, 63, v0")
    e("v_lshlrev_b32 v29, 1, v29")
    e("v_add_u32 v28, v28, v29")
    e(f"buffer_store_short v27, v28, s[32:35], s41 offen offset:{WS_Q}")
    e("s_branch K1_END")
    lab("K1_FFN")
    e("s_sub_u32 s41, s2, 64")
    e("s_lshl_b32 s41, s41, 7")
    e(f"v_mul_u32_u24 v30, {3584}, v5")
    e("v_add_u32 v30, v30, v6")
    for it in range(14):
        e(f"s_add_u32 s42, s41, {it*8*3584}")
        e(f"buffer_load_dwordx4 v[{32+it*4}:{35+it*4}], v30, s[20:23], s42 offen")
        e(f"buffer_load_dwordx4 v[{128+it*4}:{131+it*4}], v30, s[24:27], s42 offen")
    for i in range(32):
        e(f"v_mov_b32 v{96+i}, 0")
    for it in range(14):
        e(f"ds_read_b32 v24, v7 offset:{it*32}")
        e(f"ds_read_b32 v25, v7 offset:{1792+it*32}")
        e(f"s_waitcnt vmcnt({26-2*it}) lgkmcnt(0)")
        gemv(32 + it * 4, 96, it)
        gemv(128 + it * 4, 112, it)
    e("v_lshlrev_b32 v26, 3, v2")
    e("v_add_u32 v26, v26, v4")
    e("v_lshlrev_b32 v26, 9, v26")
    e("v_lshlrev_b32 v27, 1, v6")
    e("v_add_u32 v26, v26, v27")
    for m in range(2):
        for b in range(2):
            a = 96 + m * 16 + b * 8
            e(f"ds_write_b128 v26, v[{a}:{a+3}] offset:{4096+m*16384+b*256}")
            e(f"ds_write_b128 v26, v[{a+4}:{a+7}] offset:{4096+m*16384+b*256+16}")
    e("s_waitcnt lgkmcnt(0)")
    e("s_barrier")
    e("v_cmp_gt_u32 vcc, 128, v0")
    e("s_and_saveexec_b64 s[44:45], vcc")
    e("s_cbranch_execz K1_END")
    e("v_lshlrev_b32 v26, 2, v0")
    e("v_mov_b32 v27, 0")
    e("v_mov_b32 v31, 0")
    for g in range(32):
        e(f"ds_read_b32 v{32+g}, v26 offset:{4096+g*512}")
        e(f"ds_read_b32 v{64+g}, v26 offset:{4096+16384+g*512}")
    e("s_waitcnt lgkmcnt(0)")
    for g in range(32):
        e(f"v_add_f32 v27, v27, v{32+g}")
        e(f"v_add_f32 v31, v31, v{64+g}")
    rbf16(27); rbf16(31)
    e("v_mul_f32 v28, v27, v27")
    e(f"v_mul_f32 v28, {f32(0.044715)}, v28")
    e("v_add_f32 v28, 1.0, v28")
    e("v_mul_f32 v28, v28, v27")
    e(f"v_mul_f32 v28, {f32(2*math.sqrt(2/math.pi)*LOG2E)}, v28")
    e("v_exp_f32 v28, v28")
    e("s_nop 0")
    e("v_add_f32 v28, 1.0, v28")
    e("v_rcp_f32 v28, v28")
    e("s_nop 0")
    e("v_sub_f32 v28, 1.0, v28")
    e("v_mul_f32 v28, v28, v27")
    rbf16(28)
    e("v_mul_f32 v28, v28, v31")
    e("v_cvt_pk_bf16_f32 v27, v28, v28")
    e("v_lshrrev_b32 v28, 6, v0")
    e(f"v_mul_u32_u24 v28, {3584}, v28")
    e("v_and_b32 v29, 63, v0")
    e("v_lshlrev_b32 v29, 1, v29")
    e("v_add_u32 v28, v28, v29")
    e(f"s_add_u32 s41, s41, {WS_H}")
    e("buffer_store_short v27, v28, s[32:35], s41 offen")
    lab("K1_END")
    e("s_endpgm")
    return desc(k, 184)

def k2():
    k = "attn_kernel"
    header(k)
    e(f"s_cmp_ge_u32 s2, {16*NSPLIT}")
    e("s_cbranch_scc1 K2_END")
    e("s_load_dwordx2 s[4:5], s[0:1], 8")
    e("s_load_dwordx2 s[6:7], s[0:1], 16")
    e("s_load_dwordx2 s[8:9], s[0:1], 88")
    e("v_and_b32 v1, 63, v0")
    e("v_lshrrev_b32 v4, 6, v0")
    e("s_nop 0")
    e("v_readfirstlane_b32 s24, v4")
    e(f"s_lshr_b32 s27, s2, {int(math.log2(NSPLIT))}")
    e(f"s_and_b32 s28, s2, {NSPLIT-1}")
    e("s_waitcnt lgkmcnt(0)")
    srd(12, 4, 1 << 28)
    srd(16, 6, 1 << 28)
    srd(20, 8, WS_SIZE)
    e(f"s_mul_i32 s25, s2, {KPWG*512}")
    e(f"s_mul_i32 s26, s24, {KPW*512}")
    e("s_add_u32 s25, s25, s26")
    e("v_and_b32 v5, 15, v1")
    e("v_lshrrev_b32 v6, 4, v1")
    e("v_lshlrev_b32 v6, 4, v6")
    e("v_lshlrev_b32 v2, 9, v5")
    e("v_add_u32 v2, v2, v6")
    e("v_lshlrev_b32 v3, 4, v1")
    QR, KB0, KB1, DR, ACC, PR = 16, 48, 80, 112, 144, 160
    e("s_mov_b32 s26, s25")
    for m in range(8):
        e(f"buffer_load_dwordx4 v[{KB0+4*m}:{KB0+4*m+3}], v2, s[12:15], s26 offen offset:{m*64}")
    for i in range(32):
        e(f"v_mov_b32 v{QR+i}, 0")
    e("s_lshl_b32 s29, s27, 10")
    e("v_cmp_gt_u32 vcc, 2, v5")
    e("s_and_saveexec_b64 s[30:31], vcc")
    for m in range(8):
        e(f"buffer_load_dwordx4 v[{QR+4*m}:{QR+4*m+3}], v2, s[20:23], s29 offen offset:{WS_Q+m*64}")
    e("s_mov_b64 exec, s[30:31]")
    bufs = [KB0, KB1]
    for t in range(NT):
        cur = bufs[t % 2]; nxt = bufs[(t + 1) % 2]
        if t + 1 < NT:
            e(f"s_add_u32 s26, s25, {(t+1)*8192}")
            for m in range(8):
                e(f"buffer_load_dwordx4 v[{nxt+4*m}:{nxt+4*m+3}], v2, s[12:15], s26 offen offset:{m*64}")
            e("s_waitcnt vmcnt(8)")
        else:
            e("s_mov_b32 s26, s25")
            for i in range(8):
                if i == 4: e("s_add_u32 s26, s25, 4096")
                e(f"buffer_load_dwordx4 v[{nxt+4*i}:{nxt+4*i+3}], v3, s[16:19], s26 offen offset:{(i%4)*1024}")
            e("s_waitcnt vmcnt(8)")
        for m in range(8):
            c = "0" if m == 0 else f"v[{DR+4*t}:{DR+4*t+3}]"
            e(f"v_mfma_f32_16x16x32_bf16 v[{DR+4*t}:{DR+4*t+3}], v[{QR+4*m}:{QR+4*m+3}], v[{cur+4*m}:{cur+4*m+3}], {c}")
    e("s_nop 7")
    e("s_nop 1")
    sc = f32(0.0625 * LOG2E)
    for t in range(NT):
        for h in range(2):
            r = DR + 4 * t + h
            rbf16(r)
            e(f"v_mul_f32 v{r}, {sc}, v{r}")
    for h in range(2):
        e(f"v_mov_b32 v{8+h}, v{DR+h}")
        for t in range(1, NT):
            e(f"v_max_f32 v{8+h}, v{8+h}, v{DR+4*t+h}")
        dpp_reduce("max", 8 + h)
        e("s_nop 0")
        e(f"v_readlane_b32 s{32+h}, v{8+h}, 15")
    e("s_nop 1")
    for h in range(2):
        for t in range(NT):
            r = DR + 4 * t + h
            e(f"v_subrev_f32 v{r}, s{32+h}, v{r}")
            e(f"v_exp_f32 v{r}, v{r}")
        e("s_nop 0")
        e(f"v_mov_b32 v{8+h}, v{DR+h}")
        for t in range(1, NT):
            e(f"v_add_f32 v{8+h}, v{8+h}, v{DR+4*t+h}")
        dpp_reduce("add", 8 + h)
        e("s_nop 0")
        e(f"v_readlane_b32 s{34+h}, v{8+h}, 15")
    e(f"s_mul_i32 s36, s24, {2*KPW*4}")
    e("v_and_b32 v8, 1, v1")
    e(f"v_mul_u32_u24 v8, {KPW//2*4}, v8")
    e("v_lshrrev_b32 v9, 1, v1")
    e("v_lshlrev_b32 v9, 2, v9")
    e("v_add_u32 v8, v8, v9")
    e("v_add_u32 v8, s36, v8")
    e("v_cmp_gt_u32 vcc, 16, v1")
    e("s_and_saveexec_b64 s[30:31], vcc")
    for h in range(2):
        for t in range(NT):
            e(f"ds_write_b32 v8, v{DR+4*t+h} offset:{h*KPW*4+t*32}")
    e("s_mov_b64 exec, s[30:31]")
    e("v_lshrrev_b32 v9, 5, v1")
    e(f"v_mul_u32_u24 v9, {KPW//2*4}, v9")
    e("v_add_u32 v9, s36, v9")
    for i in range(16):
        e(f"v_mov_b32 v{ACC+i}, 0")
    e("s_waitcnt lgkmcnt(0)")
    NG = KPW // 16
    vb = [bufs[NT % 2], bufs[(NT + 1) % 2]]
    for g in range(NG):
        cur = vb[g % 2]; nxt = vb[(g + 1) % 2]
        for h in range(2):
            e(f"ds_read_b128 v[{PR+8*h}:{PR+8*h+3}], v9 offset:{h*KPW*4+g*32}")
            e(f"ds_read_b128 v[{PR+8*h+4}:{PR+8*h+7}], v9 offset:{h*KPW*4+g*32+16}")
        if g + 1 < NG:
            for i in range(8):
                if i % 4 == 0: e(f"s_add_u32 s26, s25, {(g+1)*8192+(i//4)*4096}")
                e(f"buffer_load_dwordx4 v[{nxt+4*i}:{nxt+4*i+3}], v3, s[16:19], s26 offen offset:{(i%4)*1024}")
            e("s_waitcnt vmcnt(8) lgkmcnt(0)")
        else:
            e("s_waitcnt vmcnt(0) lgkmcnt(0)")
        for i in range(8):
            for j in range(4):
                r = cur + 4 * i + j
                e(f"v_lshlrev_b32 v10, 16, v{r}")
                e(f"v_and_b32 v11, 0xffff0000, v{r}")
                for h in range(2):
                    e(f"v_fmac_f32 v{ACC+8*h+2*j}, v{PR+8*h+i}, v10")
                    e(f"v_fmac_f32 v{ACC+8*h+2*j+1}, v{PR+8*h+i}, v11")
    OFF_O = 4 * 2 * KPW * 4
    OFF_ML = OFF_O + 16384
    e("v_lshrrev_b32 v10, 5, v0")
    e("v_lshlrev_b32 v10, 11, v10")
    e("v_and_b32 v11, 31, v1")
    e("v_lshlrev_b32 v11, 5, v11")
    e("v_add_u32 v10, v10, v11")
    for h in range(2):
        e(f"ds_write_b128 v10, v[{ACC+8*h}:{ACC+8*h+3}] offset:{OFF_O+h*1024}")
        e(f"ds_write_b128 v10, v[{ACC+8*h+4}:{ACC+8*h+7}] offset:{OFF_O+h*1024+16}")
    e("s_lshl_b32 s36, s24, 4")
    e("v_mov_b32 v10, s36")
    e("v_mov_b32 v12, s32"); e("v_mov_b32 v13, s34"); e("v_mov_b32 v14, s33"); e("v_mov_b32 v15, s35")
    e(f"ds_write_b128 v10, v[12:15] offset:{OFF_ML}")
    e("s_waitcnt lgkmcnt(0)")
    e("s_barrier")
    e("v_mov_b32 v10, 0")
    for w in range(4):
        e(f"ds_read_b128 v[{16+4*w}:{19+4*w}], v10 offset:{OFF_ML+16*w}")
    e("v_lshlrev_b32 v11, 2, v0")
    for h in range(2):
        for w in range(4):
            for par in range(2):
                e(f"ds_read_b32 v{32+h*8+w*2+par}, v11 offset:{OFF_O+(w*2+par)*2048+h*1024}")
    e("s_waitcnt lgkmcnt(0)")
    e("s_lshl_b32 s36, s27, 1")
    e(f"s_mul_i32 s36, s36, {NSPLIT}")
    e("s_add_u32 s36, s36, s28")
    for h in range(2):
        M = 48 + h
        e(f"v_max_f32 v{M}, v{16+2*h}, v{20+2*h}")
        e(f"v_max3_f32 v{M}, v{M}, v{24+2*h}, v{28+2*h}")
        e("v_mov_b32 v50, 0"); e("v_mov_b32 v51, 0")
        for w in range(4):
            e(f"v_sub_f32 v52, v{16+4*w+2*h}, v{M}")
            e("v_exp_f32 v52, v52")
            e(f"v_add_f32 v53, v{32+h*8+w*2}, v{32+h*8+w*2+1}")
            e(f"v_fmac_f32 v50, v52, v{17+4*w+2*h}")
            e("v_fmac_f32 v51, v52, v53")
        e(f"s_add_u32 s37, s36, {h*NSPLIT}")
        e("s_lshl_b32 s38, s37, 10")
        e(f"s_add_u32 s38, s38, {WS_O}")
        e(f"buffer_store_dword v51, v11, s[20:23], s38 offen offset:0")
        e("s_lshl_b32 s38, s37, 3")
        e(f"s_add_u32 s38, s38, {WS_ML}")
        e(f"v_mov_b32 v54, v{M}")
        e("v_mov_b32 v55, v50")
        e("v_mov_b32 v56, 0")
        e("v_cmp_eq_u32 vcc, 0, v0")
        e("s_and_saveexec_b64 s[30:31], vcc")
        e(f"buffer_store_dwordx2 v[54:55], v56, s[20:23], s38 offen")
        e("s_mov_b64 exec, s[30:31]")
    lab("K2_END")
    e("s_endpgm")
    return desc(k, 176)

def k3():
    k = "proj_kernel"
    header(k)
    e("s_cmp_ge_u32 s2, 92")
    e("s_cbranch_scc1 K3_END")
    e("s_load_dwordx2 s[4:5], s[0:1], 32")
    e("s_load_dwordx2 s[6:7], s[0:1], 64")
    e("s_load_dwordx2 s[8:9], s[0:1], 88")
    e("v_and_b32 v1, 63, v0")
    e("v_lshrrev_b32 v4, 6, v0")
    e("s_nop 0")
    e("v_readfirstlane_b32 s24, v4")
    e("s_waitcnt lgkmcnt(0)")
    srd(12, 4, 4096 * 896)
    srd(16, 6, 1792 * 896)
    srd(20, 8, WS_SIZE)
    e("s_cmp_ge_u32 s24, 2")
    e("s_cbranch_scc1 K3_GEMV0")
    e("s_cmp_ge_u32 s2, 64")
    e("s_cbranch_scc1 K3_HLOAD")
    e("s_lshr_b32 s25, s2, 2")
    e("s_lshl_b32 s26, s24, 4")
    e("s_add_u32 s25, s25, s26")
    e(f"s_mul_i32 s25, s25, {NSPLIT}")
    e("v_lshlrev_b32 v2, 3, v1")
    e("s_lshl_b32 s26, s25, 3")
    e(f"s_add_u32 s26, s26, {WS_ML}")
    e("buffer_load_dwordx2 v[6:7], v2, s[20:23], s26 offen")
    e("s_waitcnt vmcnt(0)")
    e("s_and_b32 s27, s2, 3")
    e("s_lshl_b32 s27, s27, 8")
    e("s_lshl_b32 s26, s25, 10")
    e("s_add_u32 s26, s26, s27")
    e(f"s_add_u32 s26, s26, {WS_O}")
    e("v_lshlrev_b32 v3, 2, v1")
    for s in range(NSPLIT):
        if s % 4 == 0 and s: e("s_add_u32 s26, s26, 4096")
        if s == 48: e("s_waitcnt vmcnt(32)")
        e(f"buffer_load_dword v{32+s}, v3, s[20:23], s26 offen offset:{(s%4)*1024}")
    e("v_mov_b32 v8, v6")
    dpp_reduce("max", 8)
    e("s_nop 1")
    e("v_max_f32_dpp v8, v8, v8 row_bcast:15 row_mask:0xa bank_mask:0xf")
    e("s_nop 1")
    e("v_max_f32_dpp v8, v8, v8 row_bcast:31 row_mask:0xc bank_mask:0xf")
    e("s_nop 1")
    e("v_readlane_b32 s30, v8, 63")
    e("s_nop 1")
    e("v_subrev_f32 v8, s30, v6")
    e("v_exp_f32 v8, v8")
    e("s_nop 0")
    e("v_mul_f32 v9, v8, v7")
    dpp_reduce64_add(9)
    e("v_readlane_b32 s31, v9, 63")
    e("s_nop 1")
    e("v_rcp_f32 v9, s31")
    e("s_nop 0")
    e("v_mul_f32 v8, v8, v9")
    e("v_mov_b32 v10, 0")
    e("s_waitcnt vmcnt(0)")
    for s in range(NSPLIT):
        e(f"v_readlane_b32 s32, v8, {s}")
        e("s_nop 1")
        e(f"v_fmac_f32 v10, s32, v{32+s}")
    rbf16(10)
    e("s_branch K3_AWRITE")
    lab("K3_HLOAD")
    e("s_sub_u32 s25, s2, 64")
    e("s_lshl_b32 s25, s25, 7")
    e("s_mul_i32 s26, s24, 3584")
    e("s_add_u32 s25, s25, s26")
    e("v_lshlrev_b32 v3, 1, v1")
    e(f"s_add_u32 s25, s25, {WS_H}")
    e("buffer_load_ushort v10, v3, s[20:23], s25 offen")
    e("s_waitcnt vmcnt(0)")
    e("v_lshlrev_b32 v10, 16, v10")
    lab("K3_AWRITE")
    e("v_lshlrev_b32 v3, 2, v0")
    e("ds_write_b32 v3, v10")
    e("s_waitcnt lgkmcnt(0)")
    lab("K3_GEMV0")
    e("s_barrier")
    e("s_cmp_ge_u32 s2, 64")
    e("s_cbranch_scc1 K3_G2")
    e("s_mul_i32 s25, s2, 57344")
    e("s_branch K3_G3")
    lab("K3_G2")
    e("s_sub_u32 s25, s2, 64")
    e("s_mul_i32 s25, s25, 57344")
    e("s_mov_b32 s12, s16"); e("s_mov_b32 s13, s17"); e("s_mov_b32 s14, s18")
    lab("K3_G3")
    e("s_mul_i32 s26, s24, 14336")
    e("s_add_u32 s25, s25, s26")
    e("v_lshlrev_b32 v2, 4, v1")
    e("v_cmp_gt_u32 vcc, 56, v1")
    e("s_and_saveexec_b64 s[40:41], vcc")
    for r in range(16):
        if r % 4 == 0 and r: e("s_add_u32 s25, s25, 3584")
        e(f"buffer_load_dwordx4 v[{32+4*r}:{35+4*r}], v2, s[12:15], s25 offen offset:{(r%4)*896}")
    e("s_lshl_b32 s26, s24, 6")
    e("v_mov_b32 v3, s26")
    for b in range(2):
        for r4 in range(4):
            e(f"ds_read_b128 v[{96+b*16+r4*4}:{99+b*16+r4*4}], v3 offset:{b*256+r4*16}")
    for i in range(16):
        e(f"v_mov_b32 v{8+i}, 0")
    e("s_waitcnt lgkmcnt(0)")
    for r in range(16):
        e(f"s_waitcnt vmcnt({15-r})")
        for j in range(4):
            e(f"v_lshlrev_b32 v28, 16, v{32+4*r+j}")
            e(f"v_and_b32 v29, 0xffff0000, v{32+4*r+j}")
            for b in range(2):
                e(f"v_fmac_f32 v{8+b*8+2*j}, v{96+b*16+r}, v28")
                e(f"v_fmac_f32 v{8+b*8+2*j+1}, v{96+b*16+r}, v29")
    e("s_mul_i32 s26, s24, 3584")
    e("v_lshlrev_b32 v3, 5, v1")
    e("v_add_u32 v3, s26, v3")
    for b in range(2):
        e(f"ds_write_b128 v3, v[{8+b*8}:{11+b*8}] offset:{1024+b*1792}")
        e(f"ds_write_b128 v3, v[{12+b*8}:{15+b*8}] offset:{1024+b*1792+16}")
    e("s_mov_b64 exec, s[40:41]")
    e("s_waitcnt lgkmcnt(0)")
    e("s_barrier")
    e("s_mul_i32 s26, s2, 3584")
    e(f"s_add_u32 s26, s26, {WS_P3}")
    for rep in range(4):
        e(f"v_add_u32 v4, {rep*256}, v0")
        e("v_cmp_gt_u32 vcc, 896, v4")
        e("s_and_saveexec_b64 s[40:41], vcc")
        e("v_lshlrev_b32 v3, 2, v4")
        for w in range(4):
            e(f"ds_read_b32 v{8+w}, v3 offset:{1024+w*3584}")
        e("s_waitcnt lgkmcnt(0)")
        e("v_add_f32 v8, v8, v9"); e("v_add_f32 v10, v10, v11"); e("v_add_f32 v8, v8, v10")
        e("buffer_store_dword v8, v3, s[20:23], s26 offen")
        e("s_mov_b64 exec, s[40:41]")
    lab("K3_END")
    e("s_endpgm")
    return desc(k, 128)

def k4():
    k = NAME + "_kernel"
    header(k)
    e("s_lshl_b32 s3, s2, 8")
    e("v_add_u32 v1, s3, v0")
    e("v_cmp_gt_u32 vcc, 896, v1")
    e("s_and_saveexec_b64 s[40:41], vcc")
    e("s_cbranch_execz K4_END")
    e("s_load_dwordx2 s[4:5], s[0:1], 0")
    e("s_load_dwordx2 s[6:7], s[0:1], 72")
    e("s_load_dwordx2 s[8:9], s[0:1], 88")
    e("s_waitcnt lgkmcnt(0)")
    srd(12, 4, 1792)
    srd(16, 6, 1792)
    srd(20, 8, WS_SIZE)
    e("v_lshlrev_b32 v2, 2, v1")
    e("v_lshlrev_b32 v3, 1, v1")
    e("buffer_load_ushort v4, v3, s[12:15], 0 offen")
    e(f"s_mov_b32 s24, {WS_P3}")
    for j in range(92):
        if j == 60: e("s_waitcnt vmcnt(30)")
        e(f"buffer_load_dword v{16+j}, v2, s[20:23], s24 offen")
        e("s_add_u32 s24, s24, 3584")
    e("s_waitcnt vmcnt(0)")
    e("v_mov_b32 v5, 0"); e("v_mov_b32 v6, 0")
    for j in range(92):
        e(f"v_add_f32 v{5 if j < 64 else 6}, v{5 if j < 64 else 6}, v{16+j}")
    rbf16(5); rbf16(6)
    e("v_lshlrev_b32 v4, 16, v4")
    e("v_add_f32 v4, v4, v5")
    rbf16(4)
    e("v_add_f32 v4, v4, v6")
    e("v_cvt_pk_bf16_f32 v4, v4, v4")
    e("buffer_store_short v4, v3, s[16:19], 0 offen")
    lab("K4_END")
    e("s_endpgm")
    return desc(k, 112)

head = open("cdna_kernels/" + NAME + ".s.ref").read().split("; Override launch")[0]
out.append(head.rstrip())
out.append("; @launch kernel=prep_kernel grid=(92,1,1) block=(256,1,1) lds=36864")
out.append(f"; @launch kernel=attn_kernel grid=({16*NSPLIT},1,1) block=(256,1,1) lds=20736")
out.append("; @launch kernel=proj_kernel grid=(92,1,1) block=(256,1,1) lds=15360")
out.append(f"; @launch kernel={NAME}_kernel grid=(4,1,1) block=(256,1,1) lds=0")
out.append('.amdgcn_target "amdgcn-amd-amdhsa--gfx950"')
out.append(".text")
descs = []
descs += k1(); descs += k2(); descs += k3(); descs += k4()
out.append('.section .rodata,"a"')
body = "\n".join(out)
dd = []
cur = []
for line in descs:
    if line.startswith(".amdhsa_kernel"):
        dd.append(".p2align 6")
    dd.append(line)
open("cdna_kernels/" + NAME + ".s", "w").write(body + "\n" + "\n".join(dd) + "\n")
```

```python
import sys, math
NAME = "parallel_sum__gqa_block_cached__geglu_ffn__decode"
import os
NSPLIT = 64
NTF = os.environ.get("NTF"," nt")
OUTF = os.environ.get("OUTF", "cdna_kernels/" + NAME + ".s")
KPWG = 32768 // NSPLIT
KPW = KPWG // 4
NT = KPW // 16
WS_Q = 0
WS_H = 16384
WS_ML = 32768
WS_O = 65536
WS_P3 = WS_O + 32 * NSPLIT * 1024
WS_SIZE = 1073741824
LOG2E = 1.4426950408889634

out = []
def e(s): out.append("    " + s)
def lab(s): out.append(s + ":")
def f32(x):
    import struct
    return "0x%08x" % struct.unpack("<I", struct.pack("<f", x))[0]

def srd(d, ptr, size):
    e(f"s_mov_b32 s{d}, s{ptr}")
    e(f"s_and_b32 s{d+1}, s{ptr+1}, 0xffff")
    e(f"s_mov_b32 s{d+2}, {size:#x}")
    e(f"s_mov_b32 s{d+3}, 0x00020000")

def dpp_reduce(op, v):
    for sh in (1, 2, 4, 8):
        e("s_nop 1")
        if op == "max":
            e(f"v_max_f32_dpp v{v}, v{v}, v{v} row_shr:{sh} row_mask:0xf bank_mask:0xf")
        else:
            e(f"v_add_f32_dpp v{v}, v{v}, v{v} row_shr:{sh} row_mask:0xf bank_mask:0xf bound_ctrl:0")

def dpp_reduce64_add(v):
    dpp_reduce("add", v)
    e("s_nop 1")
    e(f"v_add_f32_dpp v{v}, v{v}, v{v} row_bcast:15 row_mask:0xa bank_mask:0xf")
    e("s_nop 1")
    e(f"v_add_f32_dpp v{v}, v{v}, v{v} row_bcast:31 row_mask:0xc bank_mask:0xf")
    e("s_nop 1")

def rbf16(v):
    e(f"v_cvt_pk_bf16_f32 v{v}, v{v}, v{v}")
    e(f"v_lshlrev_b32 v{v}, 16, v{v}")

def header(k):
    out.append(".globl " + k)
    out.append(".p2align 8")
    out.append(f".type {k},@function")
    lab(k)

def desc(k, vg, sg=64):
    return [".amdhsa_kernel " + k,
            f"  .amdhsa_next_free_vgpr {vg}",
            f"  .amdhsa_next_free_sgpr {sg}",
            f"  .amdhsa_accum_offset {((vg+3)//4)*4}",
            "  .amdhsa_group_segment_fixed_size 0",
            "  .amdhsa_kernarg_size 96",
            "  .amdhsa_user_sgpr_count 2",
            "  .amdhsa_user_sgpr_kernarg_segment_ptr 1",
            "  .amdhsa_system_sgpr_workgroup_id_x 1",
            ".end_amdhsa_kernel"]

def k1():
    k = "prep_kernel"
    header(k)
    e("s_cmp_ge_u32 s2, 92")
    e("s_cbranch_scc1 K1_END")
    e("s_load_dwordx2 s[4:5], s[0:1], 0")
    e("s_load_dwordx2 s[6:7], s[0:1], 24")
    e("s_load_dwordx2 s[8:9], s[0:1], 48")
    e("s_load_dwordx2 s[10:11], s[0:1], 56")
    e("s_load_dwordx2 s[28:29], s[0:1], 88")
    e("v_and_b32 v1, 63, v0")
    e("v_lshrrev_b32 v2, 6, v0")
    e("s_waitcnt lgkmcnt(0)")
    srd(12, 4, 1792)
    srd(16, 6, 448 * 4096 * 2)
    srd(20, 8, 448 * 1792 * 2)
    srd(24, 10, 448 * 1792 * 2)
    srd(32, 28, WS_SIZE)
    e("v_mul_u32_u24 v3, 14, v1")
    for b in range(2):
        for i in range(7):
            e(f"buffer_load_ushort v{8+b*7+i}, v3, s[12:15], 0 offen offset:{b*896+i*2}")
    e("s_waitcnt vmcnt(0)")
    for b in range(2):
        for i in range(7):
            e(f"v_lshlrev_b32 v{8+b*7+i}, 16, v{8+b*7+i}")
    for b in range(2):
        x0 = 8 + b * 7
        e(f"v_mov_b32 v4, v{x0}")
        for i in range(1, 7):
            e(f"v_add_f32 v4, v4, v{x0+i}")
        dpp_reduce64_add(4)
        e("v_readlane_b32 s40, v4, 63")
        e("s_nop 1")
        e("v_mov_b32 v5, s40")
        e(f"v_mul_f32 v5, {f32(1.0/448)}, v5")
        e(f"v_sub_f32 v6, v{x0}, v5")
        e("v_mul_f32 v4, v6, v6")
        for i in range(1, 7):
            e(f"v_sub_f32 v6, v{x0+i}, v5")
            e("v_fmac_f32 v4, v6, v6")
        dpp_reduce64_add(4)
        e("v_readlane_b32 s40, v4, 63")
        e("s_nop 1")
        e("v_mov_b32 v6, s40")
        e(f"v_mul_f32 v6, {f32(1.0/448)}, v6")
        rbf16(5); rbf16(6)
        e(f"v_add_f32 v6, {f32(1e-5)}, v6")
        rbf16(6)
        e("v_sqrt_f32 v6, v6")
        e("s_nop 0")
        rbf16(6)
        e("v_rcp_f32 v6, v6")
        e("s_nop 0")
        for i in range(7):
            e(f"v_sub_f32 v{x0+i}, v{x0+i}, v5")
            rbf16(x0 + i)
            e(f"v_mul_f32 v{x0+i}, v{x0+i}, v6")
            rbf16(x0 + i)
    e("v_mul_u32_u24 v3, 28, v1")
    for b in range(2):
        for i in range(7):
            e(f"ds_write_b32 v3, v{8+b*7+i} offset:{b*1792+i*4}")
    e("s_waitcnt lgkmcnt(0)")
    e("v_lshrrev_b32 v4, 3, v1")
    e("v_mul_u32_u24 v5, 112, v2")
    e("v_add_u32 v5, v5, v4")
    e("v_and_b32 v6, 7, v1")
    e("v_lshlrev_b32 v6, 4, v6")
    e("v_lshlrev_b32 v7, 2, v5")
    e("s_cmp_ge_u32 s2, 64")
    e("s_cbranch_scc1 K1_FFN")
    e("s_lshl_b32 s41, s2, 7")
    e("v_lshlrev_b32 v30, 13, v5")
    e("v_add_u32 v30, v30, v6")
    for it in range(14):
        e(f"s_add_u32 s42, s41, {it*8*8192}")
        e(f"buffer_load_dwordx4 v[{32+it*4}:{35+it*4}], v30, s[16:19], s42 offen")
    for i in range(16):
        e(f"v_mov_b32 v{96+i}, 0")
    def gemv(wreg, acc, it):
        for j in range(4):
            e(f"v_lshlrev_b32 v28, 16, v{wreg+j}")
            e(f"v_and_b32 v29, 0xffff0000, v{wreg+j}")
            for b in range(2):
                e(f"v_fmac_f32 v{acc+b*8+2*j}, v{24+b}, v28")
                e(f"v_fmac_f32 v{acc+b*8+2*j+1}, v{24+b}, v29")
    for it in range(14):
        e(f"ds_read_b32 v24, v7 offset:{it*32}")
        e(f"ds_read_b32 v25, v7 offset:{1792+it*32}")
        e(f"s_waitcnt vmcnt({13-it}) lgkmcnt(0)")
        gemv(32 + it * 4, 96, it)
    e("v_lshlrev_b32 v26, 3, v2")
    e("v_add_u32 v26, v26, v4")
    e("v_lshlrev_b32 v26, 9, v26")
    e("v_lshlrev_b32 v27, 1, v6")
    e("v_add_u32 v26, v26, v27")
    for b in range(2):
        e(f"ds_write_b128 v26, v[{96+b*8}:{99+b*8}] offset:{4096+b*256}")
        e(f"ds_write_b128 v26, v[{100+b*8}:{103+b*8}] offset:{4096+b*256+16}")
    e("s_waitcnt lgkmcnt(0)")
    e("s_barrier")
    e("v_cmp_gt_u32 vcc, 128, v0")
    e("s_and_saveexec_b64 s[44:45], vcc")
    e("s_cbranch_execz K1_END")
    e("v_lshlrev_b32 v26, 2, v0")
    e("v_mov_b32 v27, 0")
    for g in range(32):
        e(f"ds_read_b32 v{32+g}, v26 offset:{4096+g*512}")
    e("s_waitcnt lgkmcnt(0)")
    for g in range(32):
        e(f"v_add_f32 v27, v27, v{32+g}")
    e("v_cvt_pk_bf16_f32 v27, v27, v27")
    e("v_lshrrev_b32 v28, 6, v0")
    e("v_lshlrev_b32 v28, 13, v28")
    e("v_and_b32 v29, 63, v0")
    e("v_lshlrev_b32 v29, 1, v29")
    e("v_add_u32 v28, v28, v29")
    e(f"buffer_store_short v27, v28, s[32:35], s41 offen offset:{WS_Q}")
    e("s_branch K1_END")
    lab("K1_FFN")
    e("s_sub_u32 s41, s2, 64")
    e("s_lshl_b32 s41, s41, 7")
    e(f"v_mul_u32_u24 v30, {3584}, v5")
    e("v_add_u32 v30, v30, v6")
    for it in range(14):
        e(f"s_add_u32 s42, s41, {it*8*3584}")
        e(f"buffer_load_dwordx4 v[{32+it*4}:{35+it*4}], v30, s[20:23], s42 offen")
        e(f"buffer_load_dwordx4 v[{128+it*4}:{131+it*4}], v30, s[24:27], s42 offen")
    for i in range(32):
        e(f"v_mov_b32 v{96+i}, 0")
    for it in range(14):
        e(f"ds_read_b32 v24, v7 offset:{it*32}")
        e(f"ds_read_b32 v25, v7 offset:{1792+it*32}")
        e(f"s_waitcnt vmcnt({26-2*it}) lgkmcnt(0)")
        gemv(32 + it * 4, 96, it)
        gemv(128 + it * 4, 112, it)
    e("v_lshlrev_b32 v26, 3, v2")
    e("v_add_u32 v26, v26, v4")
    e("v_lshlrev_b32 v26, 9, v26")
    e("v_lshlrev_b32 v27, 1, v6")
    e("v_add_u32 v26, v26, v27")
    for m in range(2):
        for b in range(2):
            a = 96 + m * 16 + b * 8
            e(f"ds_write_b128 v26, v[{a}:{a+3}] offset:{4096+m*16384+b*256}")
            e(f"ds_write_b128 v26, v[{a+4}:{a+7}] offset:{4096+m*16384+b*256+16}")
    e("s_waitcnt lgkmcnt(0)")
    e("s_barrier")
    e("v_cmp_gt_u32 vcc, 128, v0")
    e("s_and_saveexec_b64 s[44:45], vcc")
    e("s_cbranch_execz K1_END")
    e("v_lshlrev_b32 v26, 2, v0")
    e("v_mov_b32 v27, 0")
    e("v_mov_b32 v31, 0")
    for g in range(32):
        e(f"ds_read_b32 v{32+g}, v26 offset:{4096+g*512}")
        e(f"ds_read_b32 v{64+g}, v26 offset:{4096+16384+g*512}")
    e("s_waitcnt lgkmcnt(0)")
    for g in range(32):
        e(f"v_add_f32 v27, v27, v{32+g}")
        e(f"v_add_f32 v31, v31, v{64+g}")
    rbf16(27); rbf16(31)
    e("v_mul_f32 v28, v27, v27")
    e(f"v_mul_f32 v28, {f32(0.044715)}, v28")
    e("v_add_f32 v28, 1.0, v28")
    e("v_mul_f32 v28, v28, v27")
    e(f"v_mul_f32 v28, {f32(2*math.sqrt(2/math.pi)*LOG2E)}, v28")
    e("v_exp_f32 v28, v28")
    e("s_nop 0")
    e("v_add_f32 v28, 1.0, v28")
    e("v_rcp_f32 v28, v28")
    e("s_nop 0")
    e("v_sub_f32 v28, 1.0, v28")
    e("v_mul_f32 v28, v28, v27")
    rbf16(28)
    e("v_mul_f32 v28, v28, v31")
    e("v_cvt_pk_bf16_f32 v27, v28, v28")
    e("v_lshrrev_b32 v28, 6, v0")
    e(f"v_mul_u32_u24 v28, {3584}, v28")
    e("v_and_b32 v29, 63, v0")
    e("v_lshlrev_b32 v29, 1, v29")
    e("v_add_u32 v28, v28, v29")
    e(f"s_add_u32 s41, s41, {WS_H}")
    e("buffer_store_short v27, v28, s[32:35], s41 offen")
    lab("K1_END")
    e("s_endpgm")
    return desc(k, 184)

def k2():
    k = "attn_kernel"
    header(k)
    e(f"s_cmp_ge_u32 s2, {16*NSPLIT}")
    e("s_cbranch_scc1 K2_END")
    e("s_load_dwordx2 s[4:5], s[0:1], 8")
    e("s_load_dwordx2 s[6:7], s[0:1], 16")
    e("s_load_dwordx2 s[8:9], s[0:1], 88")
    e("v_and_b32 v1, 63, v0")
    e("v_lshrrev_b32 v4, 6, v0")
    e("s_nop 0")
    e("v_readfirstlane_b32 s24, v4")
    e(f"s_lshr_b32 s27, s2, {int(math.log2(NSPLIT))}")
    e(f"s_and_b32 s28, s2, {NSPLIT-1}")
    e("s_waitcnt lgkmcnt(0)")
    srd(12, 4, 1 << 28)
    srd(16, 6, 1 << 28)
    srd(20, 8, WS_SIZE)
    e(f"s_mul_i32 s25, s2, {KPWG*512}")
    e(f"s_mul_i32 s26, s24, {KPW*512}")
    e("s_add_u32 s25, s25, s26")
    e("v_and_b32 v5, 15, v1")
    e("v_lshrrev_b32 v6, 4, v1")
    e("v_lshlrev_b32 v6, 4, v6")
    e("v_lshlrev_b32 v2, 9, v5")
    e("v_add_u32 v2, v2, v6")
    e("v_lshlrev_b32 v3, 4, v1")
    QR, KB0, KB1, DR, ACC, PR = 16, 48, 80, 112, 16, 32
    e("s_mov_b32 s26, s25")
    for m in range(8):
        e(f"buffer_load_dwordx4 v[{KB0+4*m}:{KB0+4*m+3}], v2, s[12:15], s26 offen offset:{m*64}{NTF}")
    for i in range(32):
        e(f"v_mov_b32 v{QR+i}, 0")
    e("s_lshl_b32 s29, s27, 10")
    e("v_cmp_gt_u32 vcc, 2, v5")
    e("s_and_saveexec_b64 s[30:31], vcc")
    for m in range(8):
        e(f"buffer_load_dwordx4 v[{QR+4*m}:{QR+4*m+3}], v2, s[20:23], s29 offen offset:{WS_Q+m*64}")
    e("s_mov_b64 exec, s[30:31]")
    bufs = [KB0, KB1]
    for t in range(NT):
        cur = bufs[t % 2]; nxt = bufs[(t + 1) % 2]
        if t + 1 < NT:
            e(f"s_add_u32 s26, s25, {(t+1)*8192}")
            for m in range(8):
                e(f"buffer_load_dwordx4 v[{nxt+4*m}:{nxt+4*m+3}], v2, s[12:15], s26 offen offset:{m*64}{NTF}")
            e("s_waitcnt vmcnt(8)")
        else:
            e("s_mov_b32 s26, s25")
            for i in range(8):
                if i == 4: e("s_add_u32 s26, s25, 4096")
                e(f"buffer_load_dwordx4 v[{nxt+4*i}:{nxt+4*i+3}], v3, s[16:19], s26 offen offset:{(i%4)*1024}{NTF}")
            e("s_waitcnt vmcnt(8)")
        for m in range(8):
            c = "0" if m == 0 else f"v[{DR+4*t}:{DR+4*t+3}]"
            e(f"v_mfma_f32_16x16x32_bf16 v[{DR+4*t}:{DR+4*t+3}], v[{QR+4*m}:{QR+4*m+3}], v[{cur+4*m}:{cur+4*m+3}], {c}")
    e("s_nop 7")
    e("s_nop 1")
    sc = f32(0.0625 * LOG2E)
    for t in range(NT):
        for h in range(2):
            r = DR + 4 * t + h
            rbf16(r)
            e(f"v_mul_f32 v{r}, {sc}, v{r}")
    for h in range(2):
        e(f"v_mov_b32 v{8+h}, v{DR+h}")
        for t in range(1, NT):
            e(f"v_max_f32 v{8+h}, v{8+h}, v{DR+4*t+h}")
        dpp_reduce("max", 8 + h)
        e("s_nop 0")
        e(f"v_readlane_b32 s{32+h}, v{8+h}, 15")
    e("s_nop 1")
    for h in range(2):
        for t in range(NT):
            r = DR + 4 * t + h
            e(f"v_subrev_f32 v{r}, s{32+h}, v{r}")
            e(f"v_exp_f32 v{r}, v{r}")
        e("s_nop 0")
        e(f"v_mov_b32 v{8+h}, v{DR+h}")
        for t in range(1, NT):
            e(f"v_add_f32 v{8+h}, v{8+h}, v{DR+4*t+h}")
        dpp_reduce("add", 8 + h)
        e("s_nop 0")
        e(f"v_readlane_b32 s{34+h}, v{8+h}, 15")
    e(f"s_mul_i32 s36, s24, {2*KPW*4}")
    e("v_and_b32 v8, 1, v1")
    e(f"v_mul_u32_u24 v8, {KPW//2*4}, v8")
    e("v_lshrrev_b32 v9, 1, v1")
    e("v_lshlrev_b32 v9, 2, v9")
    e("v_add_u32 v8, v8, v9")
    e("v_add_u32 v8, s36, v8")
    e("v_cmp_gt_u32 vcc, 16, v1")
    e("s_and_saveexec_b64 s[30:31], vcc")
    for h in range(2):
        for t in range(NT):
            e(f"ds_write_b32 v8, v{DR+4*t+h} offset:{h*KPW*4+t*32}")
    e("s_mov_b64 exec, s[30:31]")
    e("v_lshrrev_b32 v9, 5, v1")
    e(f"v_mul_u32_u24 v9, {KPW//2*4}, v9")
    e("v_add_u32 v9, s36, v9")
    for i in range(16):
        e(f"v_mov_b32 v{ACC+i}, 0")
    e("s_waitcnt lgkmcnt(0)")
    NG = KPW // 16
    vb = [bufs[NT % 2], bufs[(NT + 1) % 2]]
    for g in range(NG):
        cur = vb[g % 2]; nxt = vb[(g + 1) % 2]
        for h in range(2):
            e(f"ds_read_b128 v[{PR+8*h}:{PR+8*h+3}], v9 offset:{h*KPW*4+g*32}")
            e(f"ds_read_b128 v[{PR+8*h+4}:{PR+8*h+7}], v9 offset:{h*KPW*4+g*32+16}")
        if g + 1 < NG:
            for i in range(8):
                if i % 4 == 0: e(f"s_add_u32 s26, s25, {(g+1)*8192+(i//4)*4096}")
                e(f"buffer_load_dwordx4 v[{nxt+4*i}:{nxt+4*i+3}], v3, s[16:19], s26 offen offset:{(i%4)*1024}{NTF}")
            e("s_waitcnt vmcnt(8) lgkmcnt(0)")
        else:
            e("s_waitcnt vmcnt(0) lgkmcnt(0)")
        for i in range(8):
            for j in range(4):
                r = cur + 4 * i + j
                e(f"v_lshlrev_b32 v10, 16, v{r}")
                e(f"v_and_b32 v11, 0xffff0000, v{r}")
                for h in range(2):
                    e(f"v_fmac_f32 v{ACC+8*h+2*j}, v{PR+8*h+i}, v10")
                    e(f"v_fmac_f32 v{ACC+8*h+2*j+1}, v{PR+8*h+i}, v11")
    OFF_O = 4 * 2 * KPW * 4
    OFF_ML = OFF_O + 16384
    e("v_lshrrev_b32 v10, 5, v0")
    e("v_lshlrev_b32 v10, 11, v10")
    e("v_and_b32 v11, 31, v1")
    e("v_lshlrev_b32 v11, 5, v11")
    e("v_add_u32 v10, v10, v11")
    for h in range(2):
        e(f"ds_write_b128 v10, v[{ACC+8*h}:{ACC+8*h+3}] offset:{OFF_O+h*1024}")
        e(f"ds_write_b128 v10, v[{ACC+8*h+4}:{ACC+8*h+7}] offset:{OFF_O+h*1024+16}")
    e("s_lshl_b32 s36, s24, 4")
    e("v_mov_b32 v10, s36")
    e("v_mov_b32 v12, s32"); e("v_mov_b32 v13, s34"); e("v_mov_b32 v14, s33"); e("v_mov_b32 v15, s35")
    e(f"ds_write_b128 v10, v[12:15] offset:{OFF_ML}")
    e("s_waitcnt lgkmcnt(0)")
    e("s_barrier")
    e("v_mov_b32 v10, 0")
    for w in range(4):
        e(f"ds_read_b128 v[{16+4*w}:{19+4*w}], v10 offset:{OFF_ML+16*w}")
    e("v_lshlrev_b32 v11, 2, v0")
    for h in range(2):
        for w in range(4):
            for par in range(2):
                e(f"ds_read_b32 v{32+h*8+w*2+par}, v11 offset:{OFF_O+(w*2+par)*2048+h*1024}")
    e("s_waitcnt lgkmcnt(0)")
    e("s_lshl_b32 s36, s27, 1")
    e(f"s_mul_i32 s36, s36, {NSPLIT}")
    e("s_add_u32 s36, s36, s28")
    for h in range(2):
        M = 48 + h
        e(f"v_max_f32 v{M}, v{16+2*h}, v{20+2*h}")
        e(f"v_max3_f32 v{M}, v{M}, v{24+2*h}, v{28+2*h}")
        e("v_mov_b32 v50, 0"); e("v_mov_b32 v51, 0")
        for w in range(4):
            e(f"v_sub_f32 v52, v{16+4*w+2*h}, v{M}")
            e("v_exp_f32 v52, v52")
            e(f"v_add_f32 v53, v{32+h*8+w*2}, v{32+h*8+w*2+1}")
            e(f"v_fmac_f32 v50, v52, v{17+4*w+2*h}")
            e("v_fmac_f32 v51, v52, v53")
        e(f"s_add_u32 s37, s36, {h*NSPLIT}")
        e("s_lshl_b32 s38, s37, 10")
        e(f"s_add_u32 s38, s38, {WS_O}")
        e(f"buffer_store_dword v51, v11, s[20:23], s38 offen offset:0")
        e("s_lshl_b32 s38, s37, 3")
        e(f"s_add_u32 s38, s38, {WS_ML}")
        e(f"v_mov_b32 v54, v{M}")
        e("v_mov_b32 v55, v50")
        e("v_mov_b32 v56, 0")
        e("v_cmp_eq_u32 vcc, 0, v0")
        e("s_and_saveexec_b64 s[30:31], vcc")
        e(f"buffer_store_dwordx2 v[54:55], v56, s[20:23], s38 offen")
        e("s_mov_b64 exec, s[30:31]")
    lab("K2_END")
    e("s_endpgm")
    return desc(k, 144)

def k3():
    k = "proj_kernel"
    header(k)
    e("s_cmp_ge_u32 s2, 92")
    e("s_cbranch_scc1 K3_END")
    e("s_load_dwordx2 s[4:5], s[0:1], 32")
    e("s_load_dwordx2 s[6:7], s[0:1], 64")
    e("s_load_dwordx2 s[8:9], s[0:1], 88")
    e("v_and_b32 v1, 63, v0")
    e("v_lshrrev_b32 v4, 6, v0")
    e("s_nop 0")
    e("v_readfirstlane_b32 s24, v4")
    e("s_waitcnt lgkmcnt(0)")
    srd(12, 4, 4096 * 896)
    srd(16, 6, 1792 * 896)
    srd(20, 8, WS_SIZE)
    e("s_cmp_ge_u32 s24, 2")
    e("s_cbranch_scc1 K3_GEMV0")
    e("s_cmp_ge_u32 s2, 64")
    e("s_cbranch_scc1 K3_HLOAD")
    e("s_lshr_b32 s25, s2, 2")
    e("s_lshl_b32 s26, s24, 4")
    e("s_add_u32 s25, s25, s26")
    e(f"s_mul_i32 s25, s25, {NSPLIT}")
    e("v_lshlrev_b32 v2, 3, v1")
    e("s_lshl_b32 s26, s25, 3")
    e(f"s_add_u32 s26, s26, {WS_ML}")
    e("buffer_load_dwordx2 v[6:7], v2, s[20:23], s26 offen")
    e("s_waitcnt vmcnt(0)")
    e("s_and_b32 s27, s2, 3")
    e("s_lshl_b32 s27, s27, 8")
    e("s_lshl_b32 s26, s25, 10")
    e("s_add_u32 s26, s26, s27")
    e(f"s_add_u32 s26, s26, {WS_O}")
    e("v_lshlrev_b32 v3, 2, v1")
    for s in range(NSPLIT):
        if s % 4 == 0 and s: e("s_add_u32 s26, s26, 4096")
        if s == 48: e("s_waitcnt vmcnt(32)")
        e(f"buffer_load_dword v{32+s}, v3, s[20:23], s26 offen offset:{(s%4)*1024}")
    e("v_mov_b32 v8, v6")
    dpp_reduce("max", 8)
    e("s_nop 1")
    e("v_max_f32_dpp v8, v8, v8 row_bcast:15 row_mask:0xa bank_mask:0xf")
    e("s_nop 1")
    e("v_max_f32_dpp v8, v8, v8 row_bcast:31 row_mask:0xc bank_mask:0xf")
    e("s_nop 1")
    e("v_readlane_b32 s30, v8, 63")
    e("s_nop 1")
    e("v_subrev_f32 v8, s30, v6")
    e("v_exp_f32 v8, v8")
    e("s_nop 0")
    e("v_mul_f32 v9, v8, v7")
    dpp_reduce64_add(9)
    e("v_readlane_b32 s31, v9, 63")
    e("s_nop 1")
    e("v_rcp_f32 v9, s31")
    e("s_nop 0")
    e("v_mul_f32 v8, v8, v9")
    e("v_mov_b32 v10, 0")
    e("s_waitcnt vmcnt(0)")
    for s in range(NSPLIT):
        e(f"v_readlane_b32 s32, v8, {s}")
        e("s_nop 1")
        e(f"v_fmac_f32 v10, s32, v{32+s}")
    rbf16(10)
    e("s_branch K3_AWRITE")
    lab("K3_HLOAD")
    e("s_sub_u32 s25, s2, 64")
    e("s_lshl_b32 s25, s25, 7")
    e("s_mul_i32 s26, s24, 3584")
    e("s_add_u32 s25, s25, s26")
    e("v_lshlrev_b32 v3, 1, v1")
    e(f"s_add_u32 s25, s25, {WS_H}")
    e("buffer_load_ushort v10, v3, s[20:23], s25 offen")
    e("s_waitcnt vmcnt(0)")
    e("v_lshlrev_b32 v10, 16, v10")
    lab("K3_AWRITE")
    e("v_lshlrev_b32 v3, 2, v0")
    e("ds_write_b32 v3, v10")
    e("s_waitcnt lgkmcnt(0)")
    lab("K3_GEMV0")
    e("s_barrier")
    e("s_cmp_ge_u32 s2, 64")
    e("s_cbranch_scc1 K3_G2")
    e("s_mul_i32 s25, s2, 57344")
    e("s_branch K3_G3")
    lab("K3_G2")
    e("s_sub_u32 s25, s2, 64")
    e("s_mul_i32 s25, s25, 57344")
    e("s_mov_b32 s12, s16"); e("s_mov_b32 s13, s17"); e("s_mov_b32 s14, s18")
    lab("K3_G3")
    e("s_mul_i32 s26, s24, 14336")
    e("s_add_u32 s25, s25, s26")
    e("v_lshlrev_b32 v2, 4, v1")
    e("v_cmp_gt_u32 vcc, 56, v1")
    e("s_and_saveexec_b64 s[40:41], vcc")
    for r in range(16):
        if r % 4 == 0 and r: e("s_add_u32 s25, s25, 3584")
        e(f"buffer_load_dwordx4 v[{32+4*r}:{35+4*r}], v2, s[12:15], s25 offen offset:{(r%4)*896}")
    e("s_lshl_b32 s26, s24, 6")
    e("v_mov_b32 v3, s26")
    for b in range(2):
        for r4 in range(4):
            e(f"ds_read_b128 v[{96+b*16+r4*4}:{99+b*16+r4*4}], v3 offset:{b*256+r4*16}")
    for i in range(16):
        e(f"v_mov_b32 v{8+i}, 0")
    e("s_waitcnt lgkmcnt(0)")
    for r in range(16):
        e(f"s_waitcnt vmcnt({15-r})")
        for j in range(4):
            e(f"v_lshlrev_b32 v28, 16, v{32+4*r+j}")
            e(f"v_and_b32 v29, 0xffff0000, v{32+4*r+j}")
            for b in range(2):
                e(f"v_fmac_f32 v{8+b*8+2*j}, v{96+b*16+r}, v28")
                e(f"v_fmac_f32 v{8+b*8+2*j+1}, v{96+b*16+r}, v29")
    e("s_mul_i32 s26, s24, 3584")
    e("v_lshlrev_b32 v3, 5, v1")
    e("v_add_u32 v3, s26, v3")
    for b in range(2):
        e(f"ds_write_b128 v3, v[{8+b*8}:{11+b*8}] offset:{1024+b*1792}")
        e(f"ds_write_b128 v3, v[{12+b*8}:{15+b*8}] offset:{1024+b*1792+16}")
    e("s_mov_b64 exec, s[40:41]")
    e("s_waitcnt lgkmcnt(0)")
    e("s_barrier")
    e("s_mul_i32 s26, s2, 3584")
    e(f"s_add_u32 s26, s26, {WS_P3}")
    for rep in range(4):
        e(f"v_add_u32 v4, {rep*256}, v0")
        e("v_cmp_gt_u32 vcc, 896, v4")
        e("s_and_saveexec_b64 s[40:41], vcc")
        e("v_lshlrev_b32 v3, 2, v4")
        for w in range(4):
            e(f"ds_read_b32 v{8+w}, v3 offset:{1024+w*3584}")
        e("s_waitcnt lgkmcnt(0)")
        e("v_add_f32 v8, v8, v9"); e("v_add_f32 v10, v10, v11"); e("v_add_f32 v8, v8, v10")
        e("buffer_store_dword v8, v3, s[20:23], s26 offen")
        e("s_mov_b64 exec, s[40:41]")
    lab("K3_END")
    e("s_endpgm")
    return desc(k, 128)

def k4():
    k = NAME + "_kernel"
    header(k)
    e("s_lshl_b32 s3, s2, 8")
    e("v_add_u32 v1, s3, v0")
    e("v_cmp_gt_u32 vcc, 896, v1")
    e("s_and_saveexec_b64 s[40:41], vcc")
    e("s_cbranch_execz K4_END")
    e("s_load_dwordx2 s[4:5], s[0:1], 0")
    e("s_load_dwordx2 s[6:7], s[0:1], 72")
    e("s_load_dwordx2 s[8:9], s[0:1], 88")
    e("s_waitcnt lgkmcnt(0)")
    srd(12, 4, 1792)
    srd(16, 6, 1792)
    srd(20, 8, WS_SIZE)
    e("v_lshlrev_b32 v2, 2, v1")
    e("v_lshlrev_b32 v3, 1, v1")
    e("buffer_load_ushort v4, v3, s[12:15], 0 offen")
    e(f"s_mov_b32 s24, {WS_P3}")
    for j in range(92):
        if j == 60: e("s_waitcnt vmcnt(30)")
        e(f"buffer_load_dword v{16+j}, v2, s[20:23], s24 offen")
        e("s_add_u32 s24, s24, 3584")
    e("s_waitcnt vmcnt(0)")
    e("v_mov_b32 v5, 0"); e("v_mov_b32 v6, 0")
    for j in range(92):
        e(f"v_add_f32 v{5 if j < 64 else 6}, v{5 if j < 64 else 6}, v{16+j}")
    rbf16(5); rbf16(6)
    e("v_lshlrev_b32 v4, 16, v4")
    e("v_add_f32 v4, v4, v5")
    rbf16(4)
    e("v_add_f32 v4, v4, v6")
    e("v_cvt_pk_bf16_f32 v4, v4, v4")
    e("buffer_store_short v4, v3, s[16:19], 0 offen")
    lab("K4_END")
    e("s_endpgm")
    return desc(k, 112)

head = open("cdna_kernels/" + NAME + ".s.ref").read().split("; Override launch")[0]
out.append(head.rstrip())
out.append("; @launch kernel=prep_kernel grid=(92,1,1) block=(256,1,1) lds=36864")
out.append(f"; @launch kernel=attn_kernel grid=({16*NSPLIT},1,1) block=(256,1,1) lds=20736")
out.append("; @launch kernel=proj_kernel grid=(92,1,1) block=(256,1,1) lds=15360")
out.append(f"; @launch kernel={NAME}_kernel grid=(4,1,1) block=(256,1,1) lds=0")
out.append('.amdgcn_target "amdgcn-amd-amdhsa--gfx950"')
out.append(".text")
descs = []
descs += k1(); descs += k2(); descs += k3(); descs += k4()
out.append('.section .rodata,"a"')
body = "\n".join(out)
dd = []
cur = []
for line in descs:
    if line.startswith(".amdhsa_kernel"):
        dd.append(".p2align 6")
    dd.append(line)
open(OUTF, "w").write(body + "\n" + "\n".join(dd) + "\n")
```

```python
import sys, math
NAME = "parallel_sum__gqa_block_cached__geglu_ffn__decode"
import os
NSPLIT = 64
NTF = os.environ.get("NTF"," nt")
OUTF = os.environ.get("OUTF", "cdna_kernels/" + NAME + ".s")
KPWG = 32768 // NSPLIT
KPW = KPWG // 4
NT = KPW // 16
WS_Q = 0
WS_H = 16384
WS_ML = 32768
WS_O = 65536
WS_P3 = WS_O + 32 * NSPLIT * 1024
WS_SIZE = 1073741824
LOG2E = 1.4426950408889634

out = []
def e(s): out.append("    " + s)
def lab(s): out.append(s + ":")
def f32(x):
    import struct
    return "0x%08x" % struct.unpack("<I", struct.pack("<f", x))[0]

def srd(d, ptr, size):
    e(f"s_mov_b32 s{d}, s{ptr}")
    e(f"s_and_b32 s{d+1}, s{ptr+1}, 0xffff")
    e(f"s_mov_b32 s{d+2}, {size:#x}")
    e(f"s_mov_b32 s{d+3}, 0x00020000")

def dpp_reduce(op, v):
    for sh in (1, 2, 4, 8):
        e("s_nop 1")
        if op == "max":
            e(f"v_max_f32_dpp v{v}, v{v}, v{v} row_shr:{sh} row_mask:0xf bank_mask:0xf")
        else:
            e(f"v_add_f32_dpp v{v}, v{v}, v{v} row_shr:{sh} row_mask:0xf bank_mask:0xf bound_ctrl:0")

def dpp_reduce64_add(v):
    dpp_reduce("add", v)
    e("s_nop 1")
    e(f"v_add_f32_dpp v{v}, v{v}, v{v} row_bcast:15 row_mask:0xa bank_mask:0xf")
    e("s_nop 1")
    e(f"v_add_f32_dpp v{v}, v{v}, v{v} row_bcast:31 row_mask:0xc bank_mask:0xf")
    e("s_nop 1")

def rbf16(v):
    e(f"v_cvt_pk_bf16_f32 v{v}, v{v}, v{v}")
    e(f"v_lshlrev_b32 v{v}, 16, v{v}")

def header(k):
    out.append(".globl " + k)
    out.append(".p2align 8")
    out.append(f".type {k},@function")
    lab(k)

def desc(k, vg, sg=64):
    return [".amdhsa_kernel " + k,
            f"  .amdhsa_next_free_vgpr {vg}",
            f"  .amdhsa_next_free_sgpr {sg}",
            f"  .amdhsa_accum_offset {((vg+3)//4)*4}",
            "  .amdhsa_group_segment_fixed_size 0",
            "  .amdhsa_kernarg_size 96",
            "  .amdhsa_user_sgpr_count 2",
            "  .amdhsa_user_sgpr_kernarg_segment_ptr 1",
            "  .amdhsa_system_sgpr_workgroup_id_x 1",
            ".end_amdhsa_kernel"]

def k1():
    k = "prep_kernel"
    header(k)
    e("s_cmp_ge_u32 s2, 92")
    e("s_cbranch_scc1 K1_END")
    e("s_load_dwordx2 s[4:5], s[0:1], 0")
    e("s_load_dwordx2 s[6:7], s[0:1], 24")
    e("s_load_dwordx2 s[8:9], s[0:1], 48")
    e("s_load_dwordx2 s[10:11], s[0:1], 56")
    e("s_load_dwordx2 s[28:29], s[0:1], 88")
    e("v_and_b32 v1, 63, v0")
    e("v_lshrrev_b32 v2, 6, v0")
    e("s_waitcnt lgkmcnt(0)")
    srd(12, 4, 1792)
    srd(16, 6, 448 * 4096 * 2)
    srd(20, 8, 448 * 1792 * 2)
    srd(24, 10, 448 * 1792 * 2)
    srd(32, 28, WS_SIZE)
    e("v_mul_u32_u24 v3, 14, v1")
    for b in range(2):
        for i in range(7):
            e(f"buffer_load_ushort v{8+b*7+i}, v3, s[12:15], 0 offen offset:{b*896+i*2}")
    e("s_waitcnt vmcnt(0)")
    for b in range(2):
        for i in range(7):
            e(f"v_lshlrev_b32 v{8+b*7+i}, 16, v{8+b*7+i}")
    for b in range(2):
        x0 = 8 + b * 7
        e(f"v_mov_b32 v4, v{x0}")
        for i in range(1, 7):
            e(f"v_add_f32 v4, v4, v{x0+i}")
        dpp_reduce64_add(4)
        e("v_readlane_b32 s40, v4, 63")
        e("s_nop 1")
        e("v_mov_b32 v5, s40")
        e(f"v_mul_f32 v5, {f32(1.0/448)}, v5")
        e(f"v_sub_f32 v6, v{x0}, v5")
        e("v_mul_f32 v4, v6, v6")
        for i in range(1, 7):
            e(f"v_sub_f32 v6, v{x0+i}, v5")
            e("v_fmac_f32 v4, v6, v6")
        dpp_reduce64_add(4)
        e("v_readlane_b32 s40, v4, 63")
        e("s_nop 1")
        e("v_mov_b32 v6, s40")
        e(f"v_mul_f32 v6, {f32(1.0/448)}, v6")
        rbf16(5); rbf16(6)
        e(f"v_add_f32 v6, {f32(1e-5)}, v6")
        rbf16(6)
        e("v_sqrt_f32 v6, v6")
        e("s_nop 0")
        rbf16(6)
        e("v_rcp_f32 v6, v6")
        e("s_nop 0")
        for i in range(7):
            e(f"v_sub_f32 v{x0+i}, v{x0+i}, v5")
            rbf16(x0 + i)
            e(f"v_mul_f32 v{x0+i}, v{x0+i}, v6")
            rbf16(x0 + i)
    e("v_mul_u32_u24 v3, 28, v1")
    for b in range(2):
        for i in range(7):
            e(f"ds_write_b32 v3, v{8+b*7+i} offset:{b*1792+i*4}")
    e("s_waitcnt lgkmcnt(0)")
    e("v_lshrrev_b32 v4, 3, v1")
    e("v_mul_u32_u24 v5, 112, v2")
    e("v_add_u32 v5, v5, v4")
    e("v_and_b32 v6, 7, v1")
    e("v_lshlrev_b32 v6, 4, v6")
    e("v_lshlrev_b32 v7, 2, v5")
    e("s_cmp_ge_u32 s2, 64")
    e("s_cbranch_scc1 K1_FFN")
    e("s_lshl_b32 s41, s2, 7")
    e("v_lshlrev_b32 v30, 13, v5")
    e("v_add_u32 v30, v30, v6")
    for it in range(14):
        e(f"s_add_u32 s42, s41, {it*8*8192}")
        e(f"buffer_load_dwordx4 v[{32+it*4}:{35+it*4}], v30, s[16:19], s42 offen")
    for i in range(16):
        e(f"v_mov_b32 v{96+i}, 0")
    def gemv(wreg, acc, it):
        for j in range(4):
            e(f"v_lshlrev_b32 v28, 16, v{wreg+j}")
            e(f"v_and_b32 v29, 0xffff0000, v{wreg+j}")
            for b in range(2):
                e(f"v_fmac_f32 v{acc+b*8+2*j}, v{24+b}, v28")
                e(f"v_fmac_f32 v{acc+b*8+2*j+1}, v{24+b}, v29")
    for it in range(14):
        e(f"ds_read_b32 v24, v7 offset:{it*32}")
        e(f"ds_read_b32 v25, v7 offset:{1792+it*32}")
        e(f"s_waitcnt vmcnt({13-it}) lgkmcnt(0)")
        gemv(32 + it * 4, 96, it)
    e("v_lshlrev_b32 v26, 3, v2")
    e("v_add_u32 v26, v26, v4")
    e("v_lshlrev_b32 v26, 9, v26")
    e("v_lshlrev_b32 v27, 1, v6")
    e("v_add_u32 v26, v26, v27")
    for b in range(2):
        e(f"ds_write_b128 v26, v[{96+b*8}:{99+b*8}] offset:{4096+b*256}")
        e(f"ds_write_b128 v26, v[{100+b*8}:{103+b*8}] offset:{4096+b*256+16}")
    e("s_waitcnt lgkmcnt(0)")
    e("s_barrier")
    e("v_cmp_gt_u32 vcc, 128, v0")
    e("s_and_saveexec_b64 s[44:45], vcc")
    e("s_cbranch_execz K1_END")
    e("v_lshlrev_b32 v26, 2, v0")
    e("v_mov_b32 v27, 0")
    for g in range(32):
        e(f"ds_read_b32 v{32+g}, v26 offset:{4096+g*512}")
    e("s_waitcnt lgkmcnt(0)")
    for g in range(32):
        e(f"v_add_f32 v27, v27, v{32+g}")
    e("v_cvt_pk_bf16_f32 v27, v27, v27")
    e("v_lshrrev_b32 v28, 6, v0")
    e("v_lshlrev_b32 v28, 13, v28")
    e("v_and_b32 v29, 63, v0")
    e("v_lshlrev_b32 v29, 1, v29")
    e("v_add_u32 v28, v28, v29")
    e(f"buffer_store_short v27, v28, s[32:35], s41 offen offset:{WS_Q}")
    e("s_branch K1_END")
    lab("K1_FFN")
    e("s_sub_u32 s41, s2, 64")
    e("s_lshl_b32 s41, s41, 7")
    e(f"v_mul_u32_u24 v30, {3584}, v5")
    e("v_add_u32 v30, v30, v6")
    for it in range(14):
        e(f"s_add_u32 s42, s41, {it*8*3584}")
        e(f"buffer_load_dwordx4 v[{32+it*4}:{35+it*4}], v30, s[20:23], s42 offen")
        e(f"buffer_load_dwordx4 v[{128+it*4}:{131+it*4}], v30, s[24:27], s42 offen")
    for i in range(32):
        e(f"v_mov_b32 v{96+i}, 0")
    for it in range(14):
        e(f"ds_read_b32 v24, v7 offset:{it*32}")
        e(f"ds_read_b32 v25, v7 offset:{1792+it*32}")
        e(f"s_waitcnt vmcnt({26-2*it}) lgkmcnt(0)")
        gemv(32 + it * 4, 96, it)
        gemv(128 + it * 4, 112, it)
    e("v_lshlrev_b32 v26, 3, v2")
    e("v_add_u32 v26, v26, v4")
    e("v_lshlrev_b32 v26, 9, v26")
    e("v_lshlrev_b32 v27, 1, v6")
    e("v_add_u32 v26, v26, v27")
    for m in range(2):
        for b in range(2):
            a = 96 + m * 16 + b * 8
            e(f"ds_write_b128 v26, v[{a}:{a+3}] offset:{4096+m*16384+b*256}")
            e(f"ds_write_b128 v26, v[{a+4}:{a+7}] offset:{4096+m*16384+b*256+16}")
    e("s_waitcnt lgkmcnt(0)")
    e("s_barrier")
    e("v_cmp_gt_u32 vcc, 128, v0")
    e("s_and_saveexec_b64 s[44:45], vcc")
    e("s_cbranch_execz K1_END")
    e("v_lshlrev_b32 v26, 2, v0")
    e("v_mov_b32 v27, 0")
    e("v_mov_b32 v31, 0")
    for g in range(32):
        e(f"ds_read_b32 v{32+g}, v26 offset:{4096+g*512}")
        e(f"ds_read_b32 v{64+g}, v26 offset:{4096+16384+g*512}")
    e("s_waitcnt lgkmcnt(0)")
    for g in range(32):
        e(f"v_add_f32 v27, v27, v{32+g}")
        e(f"v_add_f32 v31, v31, v{64+g}")
    rbf16(27); rbf16(31)
    e("v_mul_f32 v28, v27, v27")
    e(f"v_mul_f32 v28, {f32(0.044715)}, v28")
    e("v_add_f32 v28, 1.0, v28")
    e("v_mul_f32 v28, v28, v27")
    e(f"v_mul_f32 v28, {f32(2*math.sqrt(2/math.pi)*LOG2E)}, v28")
    e("v_exp_f32 v28, v28")
    e("s_nop 0")
    e("v_add_f32 v28, 1.0, v28")
    e("v_rcp_f32 v28, v28")
    e("s_nop 0")
    e("v_sub_f32 v28, 1.0, v28")
    e("v_mul_f32 v28, v28, v27")
    rbf16(28)
    e("v_mul_f32 v28, v28, v31")
    e("v_cvt_pk_bf16_f32 v27, v28, v28")
    e("v_lshrrev_b32 v28, 6, v0")
    e(f"v_mul_u32_u24 v28, {3584}, v28")
    e("v_and_b32 v29, 63, v0")
    e("v_lshlrev_b32 v29, 1, v29")
    e("v_add_u32 v28, v28, v29")
    e(f"s_add_u32 s41, s41, {WS_H}")
    e("buffer_store_short v27, v28, s[32:35], s41 offen")
    lab("K1_END")
    e("s_endpgm")
    return desc(k, 184)

def k2():
    k = "attn_kernel"
    header(k)
    e(f"s_cmp_ge_u32 s2, {16*NSPLIT}")
    e("s_cbranch_scc1 K2_END")
    e("s_load_dwordx2 s[4:5], s[0:1], 8")
    e("s_load_dwordx2 s[6:7], s[0:1], 16")
    e("s_load_dwordx2 s[8:9], s[0:1], 88")
    e("v_and_b32 v1, 63, v0")
    e("v_lshrrev_b32 v4, 6, v0")
    e("s_nop 0")
    e("v_readfirstlane_b32 s24, v4")
    e(f"s_lshr_b32 s27, s2, {int(math.log2(NSPLIT))}")
    e(f"s_and_b32 s28, s2, {NSPLIT-1}")
    e("s_waitcnt lgkmcnt(0)")
    srd(12, 4, 1 << 28)
    srd(16, 6, 1 << 28)
    srd(20, 8, WS_SIZE)
    e(f"s_mul_i32 s25, s2, {KPWG*512}")
    e(f"s_mul_i32 s26, s24, {KPW*512}")
    e("s_add_u32 s25, s25, s26")
    e("v_and_b32 v5, 15, v1")
    e("v_lshrrev_b32 v6, 4, v1")
    e("v_lshlrev_b32 v6, 4, v6")
    e("v_lshlrev_b32 v2, 9, v5")
    e("v_add_u32 v2, v2, v6")
    e("v_lshlrev_b32 v3, 4, v1")
    QR, KB0, KB1, DR, ACC, PR = 16, 48, 80, 112, 16, 32
    e("s_mov_b32 s26, s25")
    for m in range(8):
        e(f"buffer_load_dwordx4 v[{KB0+4*m}:{KB0+4*m+3}], v2, s[12:15], s26 offen offset:{m*64}{NTF}")
    for i in range(32):
        e(f"v_mov_b32 v{QR+i}, 0")
    e("s_lshl_b32 s29, s27, 10")
    e("v_cmp_gt_u32 vcc, 2, v5")
    e("s_and_saveexec_b64 s[30:31], vcc")
    for m in range(8):
        e(f"buffer_load_dwordx4 v[{QR+4*m}:{QR+4*m+3}], v2, s[20:23], s29 offen offset:{WS_Q+m*64}")
    e("s_mov_b64 exec, s[30:31]")
    bufs = [KB0, KB1]
    for t in range(NT):
        cur = bufs[t % 2]; nxt = bufs[(t + 1) % 2]
        if t + 1 < NT:
            e(f"s_add_u32 s26, s25, {(t+1)*8192}")
            for m in range(8):
                e(f"buffer_load_dwordx4 v[{nxt+4*m}:{nxt+4*m+3}], v2, s[12:15], s26 offen offset:{m*64}{NTF}")
            e("s_waitcnt vmcnt(8)")
        else:
            e("s_mov_b32 s26, s25")
            for i in range(8):
                if i == 4: e("s_add_u32 s26, s25, 4096")
                e(f"buffer_load_dwordx4 v[{nxt+4*i}:{nxt+4*i+3}], v3, s[16:19], s26 offen offset:{(i%4)*1024}{NTF}")
            e("s_waitcnt vmcnt(8)")
        for m in range(8):
            c = "0" if m == 0 else f"v[{DR+4*t}:{DR+4*t+3}]"
            e(f"v_mfma_f32_16x16x32_bf16 v[{DR+4*t}:{DR+4*t+3}], v[{QR+4*m}:{QR+4*m+3}], v[{cur+4*m}:{cur+4*m+3}], {c}")
    e("s_nop 7")
    e("s_nop 1")
    sc = f32(0.0625 * LOG2E)
    for t in range(NT):
        for h in range(2):
            r = DR + 4 * t + h
            rbf16(r)
            e(f"v_mul_f32 v{r}, {sc}, v{r}")
    for h in range(2):
        e(f"v_mov_b32 v{8+h}, v{DR+h}")
        for t in range(1, NT):
            e(f"v_max_f32 v{8+h}, v{8+h}, v{DR+4*t+h}")
        dpp_reduce("max", 8 + h)
        e("s_nop 0")
        e(f"v_readlane_b32 s{32+h}, v{8+h}, 15")
    e("s_nop 1")
    for h in range(2):
        for t in range(NT):
            r = DR + 4 * t + h
            e(f"v_subrev_f32 v{r}, s{32+h}, v{r}")
            e(f"v_exp_f32 v{r}, v{r}")
        e("s_nop 0")
        e(f"v_mov_b32 v{8+h}, v{DR+h}")
        for t in range(1, NT):
            e(f"v_add_f32 v{8+h}, v{8+h}, v{DR+4*t+h}")
        dpp_reduce("add", 8 + h)
        e("s_nop 0")
        e(f"v_readlane_b32 s{34+h}, v{8+h}, 15")
    e(f"s_mul_i32 s36, s24, {2*KPW*4}")
    e("v_and_b32 v8, 1, v1")
    e(f"v_mul_u32_u24 v8, {KPW//2*4}, v8")
    e("v_lshrrev_b32 v9, 1, v1")
    e("v_lshlrev_b32 v9, 2, v9")
    e("v_add_u32 v8, v8, v9")
    e("v_add_u32 v8, s36, v8")
    e("v_cmp_gt_u32 vcc, 16, v1")
    e("s_and_saveexec_b64 s[30:31], vcc")
    for h in range(2):
        for t in range(NT):
            e(f"ds_write_b32 v8, v{DR+4*t+h} offset:{h*KPW*4+t*32}")
    e("s_mov_b64 exec, s[30:31]")
    e("v_lshrrev_b32 v9, 5, v1")
    e(f"v_mul_u32_u24 v9, {KPW//2*4}, v9")
    e("v_add_u32 v9, s36, v9")
    for i in range(16):
        e(f"v_mov_b32 v{ACC+i}, 0")
    e("s_waitcnt lgkmcnt(0)")
    NG = KPW // 16
    vb = [bufs[NT % 2], bufs[(NT + 1) % 2]]
    for g in range(NG):
        cur = vb[g % 2]; nxt = vb[(g + 1) % 2]
        for h in range(2):
            e(f"ds_read_b128 v[{PR+8*h}:{PR+8*h+3}], v9 offset:{h*KPW*4+g*32}")
            e(f"ds_read_b128 v[{PR+8*h+4}:{PR+8*h+7}], v9 offset:{h*KPW*4+g*32+16}")
        if g + 1 < NG:
            for i in range(8):
                if i % 4 == 0: e(f"s_add_u32 s26, s25, {(g+1)*8192+(i//4)*4096}")
                e(f"buffer_load_dwordx4 v[{nxt+4*i}:{nxt+4*i+3}], v3, s[16:19], s26 offen offset:{(i%4)*1024}{NTF}")
            e("s_waitcnt vmcnt(8) lgkmcnt(0)")
        else:
            e("s_waitcnt vmcnt(0) lgkmcnt(0)")
        for i in range(8):
            for j in range(4):
                r = cur + 4 * i + j
                e(f"v_lshlrev_b32 v10, 16, v{r}")
                e(f"v_and_b32 v11, 0xffff0000, v{r}")
                for h in range(2):
                    e(f"v_fmac_f32 v{ACC+8*h+2*j}, v{PR+8*h+i}, v10")
                    e(f"v_fmac_f32 v{ACC+8*h+2*j+1}, v{PR+8*h+i}, v11")
    OFF_O = 4 * 2 * KPW * 4
    OFF_ML = OFF_O + 16384
    e("v_lshrrev_b32 v10, 5, v0")
    e("v_lshlrev_b32 v10, 11, v10")
    e("v_and_b32 v11, 31, v1")
    e("v_lshlrev_b32 v11, 5, v11")
    e("v_add_u32 v10, v10, v11")
    for h in range(2):
        e(f"ds_write_b128 v10, v[{ACC+8*h}:{ACC+8*h+3}] offset:{OFF_O+h*1024}")
        e(f"ds_write_b128 v10, v[{ACC+8*h+4}:{ACC+8*h+7}] offset:{OFF_O+h*1024+16}")
    e("s_lshl_b32 s36, s24, 4")
    e("v_mov_b32 v10, s36")
    e("v_mov_b32 v12, s32"); e("v_mov_b32 v13, s34"); e("v_mov_b32 v14, s33"); e("v_mov_b32 v15, s35")
    e(f"ds_write_b128 v10, v[12:15] offset:{OFF_ML}")
    e("s_waitcnt lgkmcnt(0)")
    e("s_barrier")
    e("v_mov_b32 v10, 0")
    for w in range(4):
        e(f"ds_read_b128 v[{16+4*w}:{19+4*w}], v10 offset:{OFF_ML+16*w}")
    e("v_lshlrev_b32 v11, 2, v0")
    for h in range(2):
        for w in range(4):
            for par in range(2):
                e(f"ds_read_b32 v{32+h*8+w*2+par}, v11 offset:{OFF_O+(w*2+par)*2048+h*1024}")
    e("s_waitcnt lgkmcnt(0)")
    e("s_lshl_b32 s36, s27, 1")
    e(f"s_mul_i32 s36, s36, {NSPLIT}")
    e("s_add_u32 s36, s36, s28")
    for h in range(2):
        M = 48 + h
        e(f"v_max_f32 v{M}, v{16+2*h}, v{20+2*h}")
        e(f"v_max3_f32 v{M}, v{M}, v{24+2*h}, v{28+2*h}")
        e("v_mov_b32 v50, 0"); e("v_mov_b32 v51, 0")
        for w in range(4):
            e(f"v_sub_f32 v52, v{16+4*w+2*h}, v{M}")
            e("v_exp_f32 v52, v52")
            e(f"v_add_f32 v53, v{32+h*8+w*2}, v{32+h*8+w*2+1}")
            e(f"v_fmac_f32 v50, v52, v{17+4*w+2*h}")
            e("v_fmac_f32 v51, v52, v53")
        e(f"s_add_u32 s37, s36, {h*NSPLIT}")
        e("s_lshl_b32 s38, s37, 10")
        e(f"s_add_u32 s38, s38, {WS_O}")
        e(f"buffer_store_dword v51, v11, s[20:23], s38 offen offset:0")
        e("s_lshl_b32 s38, s37, 3")
        e(f"s_add_u32 s38, s38, {WS_ML}")
        e(f"v_mov_b32 v54, v{M}")
        e("v_mov_b32 v55, v50")
        e("v_mov_b32 v56, 0")
        e("v_cmp_eq_u32 vcc, 0, v0")
        e("s_and_saveexec_b64 s[30:31], vcc")
        e(f"buffer_store_dwordx2 v[54:55], v56, s[20:23], s38 offen")
        e("s_mov_b64 exec, s[30:31]")
    lab("K2_END")
    e("s_endpgm")
    return desc(k, 144)

def k3():
    k = NAME + "_kernel"
    header(k)
    e("s_cmp_ge_u32 s2, 92")
    e("s_cbranch_scc1 K3_END")
    e("s_load_dwordx2 s[4:5], s[0:1], 32")
    e("s_load_dwordx2 s[6:7], s[0:1], 64")
    e("s_load_dwordx2 s[8:9], s[0:1], 88")
    e("v_and_b32 v1, 63, v0")
    e("v_lshrrev_b32 v4, 6, v0")
    e("s_nop 0")
    e("v_readfirstlane_b32 s24, v4")
    e("s_waitcnt lgkmcnt(0)")
    srd(12, 4, 4096 * 896)
    srd(16, 6, 1792 * 896)
    srd(20, 8, WS_SIZE)
    e("s_cmp_ge_u32 s24, 2")
    e("s_cbranch_scc1 K3_GEMV0")
    e("s_cmp_ge_u32 s2, 64")
    e("s_cbranch_scc1 K3_HLOAD")
    e("s_lshr_b32 s25, s2, 2")
    e("s_lshl_b32 s26, s24, 4")
    e("s_add_u32 s25, s25, s26")
    e(f"s_mul_i32 s25, s25, {NSPLIT}")
    e("v_lshlrev_b32 v2, 3, v1")
    e("s_lshl_b32 s26, s25, 3")
    e(f"s_add_u32 s26, s26, {WS_ML}")
    e("buffer_load_dwordx2 v[6:7], v2, s[20:23], s26 offen")
    e("s_waitcnt vmcnt(0)")
    e("s_and_b32 s27, s2, 3")
    e("s_lshl_b32 s27, s27, 8")
    e("s_lshl_b32 s26, s25, 10")
    e("s_add_u32 s26, s26, s27")
    e(f"s_add_u32 s26, s26, {WS_O}")
    e("v_lshlrev_b32 v3, 2, v1")
    for s in range(NSPLIT):
        if s % 4 == 0 and s: e("s_add_u32 s26, s26, 4096")
        if s == 48: e("s_waitcnt vmcnt(32)")
        e(f"buffer_load_dword v{32+s}, v3, s[20:23], s26 offen offset:{(s%4)*1024}")
    e("v_mov_b32 v8, v6")
    dpp_reduce("max", 8)
    e("s_nop 1")
    e("v_max_f32_dpp v8, v8, v8 row_bcast:15 row_mask:0xa bank_mask:0xf")
    e("s_nop 1")
    e("v_max_f32_dpp v8, v8, v8 row_bcast:31 row_mask:0xc bank_mask:0xf")
    e("s_nop 1")
    e("v_readlane_b32 s30, v8, 63")
    e("s_nop 1")
    e("v_subrev_f32 v8, s30, v6")
    e("v_exp_f32 v8, v8")
    e("s_nop 0")
    e("v_mul_f32 v9, v8, v7")
    dpp_reduce64_add(9)
    e("v_readlane_b32 s31, v9, 63")
    e("s_nop 1")
    e("v_rcp_f32 v9, s31")
    e("s_nop 0")
    e("v_mul_f32 v8, v8, v9")
    e("v_mov_b32 v10, 0")
    e("s_waitcnt vmcnt(0)")
    for s in range(NSPLIT):
        e(f"v_readlane_b32 s32, v8, {s}")
        e("s_nop 1")
        e(f"v_fmac_f32 v10, s32, v{32+s}")
    rbf16(10)
    e("s_branch K3_AWRITE")
    lab("K3_HLOAD")
    e("s_sub_u32 s25, s2, 64")
    e("s_lshl_b32 s25, s25, 7")
    e("s_mul_i32 s26, s24, 3584")
    e("s_add_u32 s25, s25, s26")
    e("v_lshlrev_b32 v3, 1, v1")
    e(f"s_add_u32 s25, s25, {WS_H}")
    e("buffer_load_ushort v10, v3, s[20:23], s25 offen")
    e("s_waitcnt vmcnt(0)")
    e("v_lshlrev_b32 v10, 16, v10")
    lab("K3_AWRITE")
    e("v_lshlrev_b32 v3, 2, v0")
    e("ds_write_b32 v3, v10")
    e("s_waitcnt lgkmcnt(0)")
    lab("K3_GEMV0")
    e("s_barrier")
    e("s_cmp_ge_u32 s2, 64")
    e("s_cbranch_scc1 K3_G2")
    e("s_mul_i32 s25, s2, 57344")
    e("s_branch K3_G3")
    lab("K3_G2")
    e("s_sub_u32 s25, s2, 64")
    e("s_mul_i32 s25, s25, 57344")
    e("s_mov_b32 s12, s16"); e("s_mov_b32 s13, s17"); e("s_mov_b32 s14, s18")
    lab("K3_G3")
    e("s_mul_i32 s26, s24, 14336")
    e("s_add_u32 s25, s25, s26")
    e("v_lshlrev_b32 v2, 4, v1")
    e("v_cmp_gt_u32 vcc, 56, v1")
    e("s_and_saveexec_b64 s[40:41], vcc")
    for r in range(16):
        if r % 4 == 0 and r: e("s_add_u32 s25, s25, 3584")
        e(f"buffer_load_dwordx4 v[{32+4*r}:{35+4*r}], v2, s[12:15], s25 offen offset:{(r%4)*896}")
    e("s_lshl_b32 s26, s24, 6")
    e("v_mov_b32 v3, s26")
    for b in range(2):
        for r4 in range(4):
            e(f"ds_read_b128 v[{96+b*16+r4*4}:{99+b*16+r4*4}], v3 offset:{b*256+r4*16}")
    for i in range(16):
        e(f"v_mov_b32 v{8+i}, 0")
    e("s_waitcnt lgkmcnt(0)")
    for r in range(16):
        e(f"s_waitcnt vmcnt({15-r})")
        for j in range(4):
            e(f"v_lshlrev_b32 v28, 16, v{32+4*r+j}")
            e(f"v_and_b32 v29, 0xffff0000, v{32+4*r+j}")
            for b in range(2):
                e(f"v_fmac_f32 v{8+b*8+2*j}, v{96+b*16+r}, v28")
                e(f"v_fmac_f32 v{8+b*8+2*j+1}, v{96+b*16+r}, v29")
    e("s_mul_i32 s26, s24, 3584")
    e("v_lshlrev_b32 v3, 5, v1")
    e("v_add_u32 v3, s26, v3")
    for b in range(2):
        e(f"ds_write_b128 v3, v[{8+b*8}:{11+b*8}] offset:{1024+b*1792}")
        e(f"ds_write_b128 v3, v[{12+b*8}:{15+b*8}] offset:{1024+b*1792+16}")
    e("s_mov_b64 exec, s[40:41]")
    e("s_waitcnt lgkmcnt(0)")
    e("s_barrier")
    e("s_mul_i32 s26, s2, 3584")
    e(f"s_add_u32 s26, s26, {WS_P3}")
    for rep in range(4):
        e(f"v_add_u32 v4, {rep*256}, v0")
        e("v_cmp_gt_u32 vcc, 896, v4")
        e("s_and_saveexec_b64 s[40:41], vcc")
        e("v_lshlrev_b32 v3, 2, v4")
        for w in range(4):
            e(f"ds_read_b32 v{8+w}, v3 offset:{1024+w*3584}")
        e("s_waitcnt lgkmcnt(0)")
        e("v_add_f32 v8, v8, v9"); e("v_add_f32 v10, v10, v11"); e("v_add_f32 v8, v8, v10")
        e("buffer_store_dword v8, v3, s[20:23], s26 offen sc1")
        e("s_mov_b64 exec, s[40:41]")
    e("s_load_dwordx2 s[4:5], s[0:1], 0")
    e("s_load_dwordx2 s[6:7], s[0:1], 72")
    e("s_load_dwordx2 s[28:29], s[0:1], 80")
    e("s_waitcnt vmcnt(0) lgkmcnt(0)")
    srd(12, 4, 1792)
    srd(16, 6, 1792)
    srd(32, 28, 256)
    e("s_barrier")
    e("v_cmp_eq_u32 vcc, 0, v0")
    e("s_and_saveexec_b64 s[40:41], vcc")
    e("s_cbranch_execz K3_NOATOM")
    e("v_mov_b32 v8, 1")
    e("v_mov_b32 v9, 0")
    e("buffer_atomic_add v8, v9, s[32:35], 0 offen sc0")
    e("s_waitcnt vmcnt(0)")
    e("ds_write_b32 v9, v8")
    e("s_waitcnt lgkmcnt(0)")
    lab("K3_NOATOM")
    e("s_mov_b64 exec, s[40:41]")
    e("s_barrier")
    e("v_mov_b32 v9, 0")
    e("ds_read_b32 v8, v9")
    e("s_waitcnt lgkmcnt(0)")
    e("v_readfirstlane_b32 s30, v8")
    e("s_cmp_lg_u32 s30, 91")
    e("s_cbranch_scc1 K3_END")
    for rep in range(4):
        e(f"v_add_u32 v1, {rep*256}, v0")
        e("v_cmp_gt_u32 vcc, 896, v1")
        e("s_and_saveexec_b64 s[40:41], vcc")
        e(f"s_cbranch_execz K3_END")
        e("v_lshlrev_b32 v2, 2, v1")
        e("v_lshlrev_b32 v3, 1, v1")
        e("buffer_load_ushort v4, v3, s[12:15], 0 offen")
        e(f"s_mov_b32 s24, {WS_P3}")
        for j in range(92):
            if j == 60: e("s_waitcnt vmcnt(30)")
            e(f"buffer_load_dword v{16+j}, v2, s[20:23], s24 offen sc1")
            e("s_add_u32 s24, s24, 3584")
        e("s_waitcnt vmcnt(0)")
        e("v_mov_b32 v5, 0"); e("v_mov_b32 v6, 0")
        for j in range(92):
            e(f"v_add_f32 v{5 if j < 64 else 6}, v{5 if j < 64 else 6}, v{16+j}")
        rbf16(5); rbf16(6)
        e("v_lshlrev_b32 v4, 16, v4")
        e("v_add_f32 v4, v4, v5")
        rbf16(4)
        e("v_add_f32 v4, v4, v6")
        e("v_cvt_pk_bf16_f32 v4, v4, v4")
        e("buffer_store_short v4, v3, s[16:19], 0 offen")
        e("s_mov_b64 exec, s[40:41]")
    lab("K3_END")
    e("s_endpgm")
    return desc(k, 128)

def k4():
    k = NAME + "_kernel"
    header(k)
    e("s_lshl_b32 s3, s2, 8")
    e("v_add_u32 v1, s3, v0")
    e("v_cmp_gt_u32 vcc, 896, v1")
    e("s_and_saveexec_b64 s[40:41], vcc")
    e("s_cbranch_execz K4_END")
    e("s_load_dwordx2 s[4:5], s[0:1], 0")
    e("s_load_dwordx2 s[6:7], s[0:1], 72")
    e("s_load_dwordx2 s[8:9], s[0:1], 88")
    e("s_waitcnt lgkmcnt(0)")
    srd(12, 4, 1792)
    srd(16, 6, 1792)
    srd(20, 8, WS_SIZE)
    e("v_lshlrev_b32 v2, 2, v1")
    e("v_lshlrev_b32 v3, 1, v1")
    e("buffer_load_ushort v4, v3, s[12:15], 0 offen")
    e(f"s_mov_b32 s24, {WS_P3}")
    for j in range(92):
        if j == 60: e("s_waitcnt vmcnt(30)")
        e(f"buffer_load_dword v{16+j}, v2, s[20:23], s24 offen")
        e("s_add_u32 s24, s24, 3584")
    e("s_waitcnt vmcnt(0)")
    e("v_mov_b32 v5, 0"); e("v_mov_b32 v6, 0")
    for j in range(92):
        e(f"v_add_f32 v{5 if j < 64 else 6}, v{5 if j < 64 else 6}, v{16+j}")
    rbf16(5); rbf16(6)
    e("v_lshlrev_b32 v4, 16, v4")
    e("v_add_f32 v4, v4, v5")
    rbf16(4)
    e("v_add_f32 v4, v4, v6")
    e("v_cvt_pk_bf16_f32 v4, v4, v4")
    e("buffer_store_short v4, v3, s[16:19], 0 offen")
    lab("K4_END")
    e("s_endpgm")
    return desc(k, 112)

head = open("cdna_kernels/" + NAME + ".s.ref").read().split("; Override launch")[0]
out.append(head.rstrip())
out.append("; @launch kernel=prep_kernel grid=(92,1,1) block=(256,1,1) lds=36864")
out.append(f"; @launch kernel=attn_kernel grid=({16*NSPLIT},1,1) block=(256,1,1) lds=20736")
out.append(f"; @launch kernel={NAME}_kernel grid=(92,1,1) block=(256,1,1) lds=15360")
out.append('.amdgcn_target "amdgcn-amd-amdhsa--gfx950"')
out.append(".text")
descs = []
descs += k1(); descs += k2(); descs += k3()
out.append('.section .rodata,"a"')
body = "\n".join(out)
dd = []
cur = []
for line in descs:
    if line.startswith(".amdhsa_kernel"):
        dd.append(".p2align 6")
    dd.append(line)
open(OUTF, "w").write(body + "\n" + "\n".join(dd) + "\n")
```
